```python
import torch

def _softmax(x, axis=-1):
    return torch.softmax(x, dim=axis)
def _gelu(x):
    return torch.nn.functional.gelu(x, approximate="tanh")
def _silu(x):
    return torch.nn.functional.silu(x)
def _sigmoid(x):
    return torch.sigmoid(x)
def _layernorm(x, axis=-1, eps=1e-5):
    m = x.mean(dim=axis, keepdim=True)
    v = x.var(dim=axis, keepdim=True, unbiased=False)
    return (x - m) / torch.sqrt(v + eps)
def _scatter_add(tgt, idx, src, axis=0):
    return tgt.clone().index_add_(axis, idx, src)
def _segment_sum(src, seg, n):
    out = torch.zeros((n,) + src.shape[1:], dtype=src.dtype)
    return out.index_add_(0, seg, src)
def _pad(x, pw):
    flat = tuple(v for pair in reversed(pw) for v in pair)
    return torch.nn.functional.pad(x, flat)

kernel_name = 'parallel_sum__linear_kernel_hedgehog__glu_gated_reglu__prompt'

def setup_inputs():

    _w = (lambda a: (lambda t: t.to(torch.bfloat16) if t.is_floating_point() else t)(torch.as_tensor(a)))
    def _A_setup():
        B, S, D, H = 1, 2048, 1024, 32
        Dh = D // H
        return {
            "x": _w((lambda *s: torch.randn(*s, dtype=torch.bfloat16) * 0.05)(B, S, D)),
            "wqkv": _w((lambda *s: torch.randn(*s, dtype=torch.bfloat16) * 0.2)(D, 3 * D)),
            "w_phi": _w((lambda *s: torch.randn(*s, dtype=torch.bfloat16) * 0.2)(H, Dh, Dh) * (Dh ** -0.5)),
            "wo": _w((lambda *s: torch.randn(*s, dtype=torch.bfloat16) * 0.05)(D, D)),
        }
    _A_in = _A_setup()

    def _B_setup():
        B, S, D, F = 1, 2048, 1024, 3584
        return {
            "x": _w((lambda *s: torch.randn(*s, dtype=torch.bfloat16) * 0.05)(B, S, D)),
            "W_gate": _w((lambda *s: torch.randn(*s, dtype=torch.bfloat16) * 0.4)(D, F) * (2.0 / D) ** 0.5),
            "W_up": _w((lambda *s: torch.randn(*s, dtype=torch.bfloat16) * 0.4)(D, F) * (2.0 / D) ** 0.5),
            "W_down": _w((lambda *s: torch.randn(*s, dtype=torch.bfloat16) * 0.4)(F, D) * (1.0 / F) ** 0.5),
        }
    _B_in = _B_setup()

    return {
        "A_x": _A_in["x"],
        "A_wqkv": _A_in["wqkv"],
        "A_w_phi": _A_in["w_phi"],
        "A_wo": _A_in["wo"],
        "B_x": _B_in["x"],
        "B_W_gate": _B_in["W_gate"],
        "B_W_up": _B_in["W_up"],
        "B_W_down": _B_in["W_down"],
    }

def reference(A_x, A_wqkv, A_w_phi, A_wo, B_x, B_W_gate, B_W_up, B_W_down):
    def _A_ref(x, wqkv, w_phi, wo):
        B, S, D = x.shape
        H = 32; Dh = D // H
        qkv = (lambda x, *d: x.permute(*d))((x @ wqkv).reshape(B, S, 3, H, Dh), 2, 0, 3, 1, 4)
        q, k, v = qkv[0], qkv[1], qkv[2]
        pq = torch.einsum("bhsd,hdf->bhsf", q, w_phi)
        pk = torch.einsum("bhsd,hdf->bhsf", k, w_phi)
        phi_q = torch.concatenate([_softmax(pq, axis=-1), _softmax(-pq, axis=-1)], axis=-1)
        phi_k = torch.concatenate([_softmax(pk, axis=-1), _softmax(-pk, axis=-1)], axis=-1)
        kv = torch.einsum("bhsf,bhsd->bhfd", phi_k, v)
        z  = torch.einsum("bhsf->bhf", phi_k)
        num = torch.einsum("bhqf,bhfd->bhqd", phi_q, kv)
        den = torch.einsum("bhqf,bhf->bhq", phi_q, z)[..., None] + 1e-6
        o = num / den
        return (lambda x, *d: x.permute(*d))(o, 0, 2, 1, 3).reshape(B, S, D) @ wo

    def _B_ref(x, W_gate, W_up, W_down):
        gate = torch.einsum("bsd,df->bsf", x, W_gate)
        up = torch.einsum("bsd,df->bsf", x, W_up)
        gate = gate * (lambda x, dt: x.to(dt))(gate > 0, gate.dtype)
        h = gate * up
        return torch.einsum("bsf,fd->bsd", h, W_down)

    x = A_x
    xn = _layernorm(x, axis=-1)
    return x + _A_ref(xn, A_wqkv, A_w_phi, A_wo) + _B_ref(xn, B_W_gate, B_W_up, B_W_down)
```

```python
import re

def v(i): return "v%d" % i
def a(i): return "a%d" % i
def s(i): return "s%d" % i
def vr(i, n): return "v[%d:%d]" % (i, i + n - 1) if n > 1 else "v%d" % i
def ar(i, n): return "a[%d:%d]" % (i, i + n - 1) if n > 1 else "a%d" % i
def sr(i, n): return "s[%d:%d]" % (i, i + n - 1) if n > 1 else "s%d" % i
def R(i, n=1):
    if i >= 256:
        return ar(i - 256, n)
    assert i + n <= 256, (i, n)
    return vr(i, n)

_REG = re.compile(r'^(-|\|)?(abs\()?([vas])(\d+|\[(\d+):(\d+)\])\)?\|?$')
def regs_of(tok):
    tok = tok.strip()
    if tok == 'vcc': return {('s', 'vcc')}
    if tok == 'exec': return {('s', 'exec')}
    if tok == 'm0': return {('s', 'm0')}
    if tok == 'scc': return {('s', 'scc')}
    t = tok.lstrip('-')
    t = t.replace('abs(', '').replace(')', '').replace('|', '')
    m = re.match(r'^([vas])(\d+)$', t)
    if m: return {(m.group(1), int(m.group(2)))}
    m = re.match(r'^([vas])\[(\d+):(\d+)\]$', t)
    if m: return {(m.group(1), i) for i in range(int(m.group(2)), int(m.group(3)) + 1)}
    return set()

TRANS = ('v_exp_f32', 'v_log_f32', 'v_rcp_f32', 'v_rsq_f32', 'v_sqrt_f32', 'v_sin_f32', 'v_cos_f32')

class I:
    __slots__ = ('text', 'op', 'kind', 'wr', 'rd', 'ops', 'passes', 'srcc', 'srcab', 'dpp', 'data', 'lds')
    def __init__(self, text):
        self.text = text
        t = text.split(';')[0].strip()
        self.op = None; self.kind = 'none'; self.wr = set(); self.rd = set(); self.ops = []
        self.passes = 0; self.srcc = set(); self.srcab = set(); self.dpp = False; self.data = set(); self.lds = False
        if not t or t.endswith(':') or t.startswith('.'):
            self.kind = 'label' if t.endswith(':') else 'none'
            return
        parts = t.split(None, 1)
        op = parts[0]; self.op = op
        rest = parts[1] if len(parts) > 1 else ''
        toks = [x.strip() for x in rest.split(',')] if rest else []
        rest2 = re.sub(r'\b(op_sel|op_sel_hi|neg_lo|neg_hi|quad_perm):\[[^\]]*\]', lambda m: m.group(0).replace(',', '#'), rest)
        toks = [x.strip() for x in rest2.split(',')] if rest2 else []
        mods = ''
        if toks:
            last = toks[-1].split()
            if last:
                toks[-1] = last[0]; mods = ' '.join(last[1:])
        self.ops = toks
        mo = re.search(r'offset:(-?\d+)', rest)
        if mo:
            ov = int(mo.group(1))
            if op.startswith('buffer_'): assert 0 <= ov <= 4095, "buffer offset out of range: " + text
            elif op.startswith('ds_'): assert 0 <= ov <= 65535, "ds offset out of range: " + text
            elif op.startswith('global_'): assert -4096 <= ov <= 4095, "global offset out of range: " + text
        rg = [regs_of(x) for x in toks]
        base = op.replace('_e32', '').replace('_e64', '').replace('_dpp', '').replace('_sdwa', '')
        if op.startswith('v_mfma'):
            self.kind = 'mfma'
            self.passes = 8 if '32x32x16' in op else 4 if '16x16x32' in op else None
            assert self.passes, op
            self.wr = rg[0]; self.srcab = rg[1] | rg[2]; self.srcc = rg[3]; self.rd = self.srcab | self.srcc
        elif op.startswith('v_'):
            self.kind = 'trans' if base in TRANS else 'valu'
            self.dpp = ('row_' in rest) or ('quad_perm' in rest) or op.endswith('_dpp')
            if base.startswith('v_cmp'):
                self.wr = rg[0]; self.rd = set().union(*rg[1:]) if len(rg) > 1 else set()
            elif base in ('v_readfirstlane_b32', 'v_readlane_b32'):
                self.kind = 'rdlane'; self.wr = rg[0]; self.rd = set().union(*rg[1:])
            elif base.startswith('v_permlane') and 'swap' in base:
                self.kind = 'perm'; self.wr = rg[0] | rg[1]; self.rd = rg[0] | rg[1]
            elif base in ('v_add_co_u32', 'v_sub_co_u32', 'v_addc_co_u32', 'v_subb_co_u32'):
                self.wr = rg[0] | rg[1]; self.rd = set().union(*rg[2:])
            elif base in ('v_fmac_f32', 'v_dot2c_f32_bf16', 'v_pk_fmac_f16', 'v_writelane_b32'):
                self.wr = rg[0]; self.rd = set().union(*rg)
            elif base == 'v_nop':
                pass
            else:
                self.wr = rg[0]; self.rd = set().union(*rg[1:]) if len(rg) > 1 else set()
                if base == 'v_cndmask_b32' and len(toks) == 3: self.rd |= {('s', 'vcc')}
                if self.dpp and 'row_mask:0xf' not in rest and 'bound_ctrl' not in rest: self.rd |= rg[0]
                if self.dpp: self.rd |= rg[0]
        elif op.startswith('ds_'):
            self.kind = 'ds'
            if op.startswith('ds_read') or op.startswith('ds_bpermute') or op.startswith('ds_permute') or op.startswith('ds_swizzle'):
                self.wr = rg[0]; self.rd = set().union(*rg[1:])
            else:
                self.rd = set().union(*rg); self.data = set().union(*rg[1:])
        elif op.startswith('buffer_') or op.startswith('global_'):
            self.kind = 'vmem'
            allm = rest.split()
            self.lds = (' lds' in (' ' + rest + ' ')) or ('_lds_' in op)
            if op in ('buffer_inv', 'buffer_wbl2'):
                pass
            elif self.lds:
                self.rd = set().union(*rg) | {('s', 'm0')}
            elif 'load' in op:
                self.wr = rg[0]; self.rd = set().union(*rg[1:])
            elif 'store' in op:
                self.rd = set().union(*rg)
                self.data = rg[0] if op.startswith('buffer_') else rg[1]
            elif 'atomic' in op:
                self.rd = set().union(*rg)
                if 'sc0' in rest:
                    self.wr = rg[0]
            else:
                raise ValueError(text)
        elif op.startswith('s_'):
            self.kind = 'salu'
            if op in ('s_waitcnt', 's_barrier', 's_nop', 's_endpgm', 's_setprio', 's_sleep', 's_branch') or op.startswith('s_cbranch'):
                self.kind = 'ctl'
                if op in ('s_cbranch_vccz', 's_cbranch_vccnz'): self.rd = {('s', 'vcc')}
            elif op.startswith('s_cmp') or op.startswith('s_bitcmp'):
                self.rd = set().union(*rg) if rg else set()
            elif op.startswith('s_load') or op in ('s_memtime', 's_memrealtime'):
                self.kind = 'smem'; self.wr = rg[0]; self.rd = set().union(*rg[1:]) if len(rg) > 1 else set()
            elif op in ('s_setpc_b64',):
                self.kind = 'ctl'; self.rd = rg[0]
            elif op in ('s_swappc_b64',):
                self.kind = 'ctl'; self.wr = rg[0]; self.rd = rg[1]
            else:
                self.wr = rg[0]; self.rd = set().union(*rg[1:]) if len(rg) > 1 else set()
                if 'saveexec' in op: self.wr |= {('s', 'exec')}
        else:
            raise ValueError("unknown instruction: " + text)

    def is_valu(self): return self.kind in ('valu', 'trans', 'perm', 'rdlane')
    def states(self):
        if self.op == 's_nop': return int(self.ops[0], 0) + 1
        if self.kind in ('none', 'label'): return 0
        return 1

def need(p, c):
    n = 0
    vw = {r for r in p.wr if r[0] in 'va'}
    sw = {r for r in p.wr if r[0] == 's'}
    if p.is_valu():
        if c.kind == 'mfma' and (vw & c.rd): n = max(n, 2)
        if p.kind == 'trans' and c.is_valu() and c.kind != 'trans' and (vw & c.rd): n = max(n, 1)
        if p.kind == 'trans' and c.kind == 'trans' and (vw & c.rd): n = max(n, 1)
        if c.kind == 'perm' and (vw & c.rd): n = max(n, 2)
        if c.kind == 'rdlane' and (vw & c.rd): n = max(n, 1)
        if c.is_valu() and c.dpp and (vw & c.rd): n = max(n, 2)
        if sw:
            if c.is_valu() and (sw & c.rd): n = max(n, 4 if c.kind == 'rdlane' else 2)
            if c.kind == 'vmem' and (sw & c.rd): n = max(n, 5)
            if c.kind in ('salu', 'ctl', 'smem') and (sw & c.rd): n = max(n, 4)
    if p.kind == 'mfma':
        big = p.passes == 8
        if c.kind == 'mfma':
            if p.wr & c.srcab: n = max(n, 12 if big else 8)
            if p.wr & c.srcc:
                if not (c.srcc == p.wr and c.passes == p.passes): n = max(n, 10 if big else 6)
            elif p.wr & c.wr and not (c.wr == p.wr): n = max(n, 10 if big else 6)
            if (p.wr & c.wr) and not (p.wr & c.srcc):
                n = max(n, 12 if big else 8)
        elif c.is_valu() or c.kind in ('vmem', 'ds'):
            if p.wr & (c.rd | c.wr): n = max(n, 12 if big else 8)
        if c.is_valu() and (p.srcc & c.wr): n = max(n, 7 if big else 3)
    if p.kind == 'salu' and ('s', 'm0') in p.wr and c.kind == 'vmem' and c.lds: n = max(n, 1)
    if p.kind in ('vmem',) and p.data and len(p.data) >= 3:
        if p.data & c.wr: n = max(n, 2 if c.is_valu() else 1)
    if p.kind == 'ds' and p.data and len(p.data) >= 3:
        if p.data & c.wr and c.is_valu(): n = max(n, 2)
    return n

MAXD = 14
def fix_hazards(lines, report=None):
    out = []
    hist = []
    nins = 0
    for t in lines:
        ins = I(t)
        if ins.kind in ('none', 'label'):
            out.append(t); continue
        req = 0
        d = 0
        for p in reversed(hist):
            k = need(p, ins)
            if k > d: req = max(req, k - d)
            d += p.states()
            if d >= MAXD: break
        if req > 0:
            nins += 1
            r = req
            while r > 0:
                k = min(r, 16)
                nop = "  s_nop %d" % (k - 1)
                out.append(nop); hist.append(I(nop)); r -= k
            if report is not None: report.append((ins.text, req))
        out.append(t); hist.append(ins)
        if len(hist) > 40: hist = hist[-20:]
    return out

def check_waits(lines, name=''):
    vq = []
    lq = []
    sm = []
    errs = []
    for n, t in enumerate(lines):
        ins = I(t)
        if ins.kind in ('none', 'label'): continue
        if ins.op == 's_waitcnt':
            m = re.search(r'vmcnt\((\d+)\)', t)
            if m:
                k = int(m.group(1))
                if len(vq) > k: vq = vq[len(vq) - k:] if k else []
            m = re.search(r'lgkmcnt\((\d+)\)', t)
            if m:
                k = int(m.group(1))
                if k == 0: lq = []; sm = []
                elif not sm:
                    if len(lq) > k: lq = lq[len(lq) - k:]
            continue
        touch = ins.rd | ins.wr
        for q, nm in ((vq, 'vm'), (lq, 'lgkm'), (sm, 'smem')):
            for dst in q:
                hit = dst & touch
                if hit:
                    if (nm == 'lgkm' and ins.kind == 'ds' and not (dst & ins.rd)) or (nm == 'vm' and ins.kind == 'vmem' and not (dst & ins.rd)):
                        continue
                    errs.append("%s line %d: %s touches pending %s dst %s" % (name, n, t.strip(), nm, sorted(hit)[:4]))
        if ins.kind == 'vmem': vq.append(set(ins.wr))
        elif ins.kind == 'ds': lq.append(set(ins.wr))
        elif ins.kind == 'smem': sm.append(set(ins.wr))
        if len(vq) > 63 + 1: errs.append("%s line %d: more than 63 vmem outstanding" % (name, n))
        if len(lq) > 15 + 40: pass
    return errs

class Asm:
    def __init__(self): self.L = []
    def e(self, fmt, *args):
        t = fmt % args if args else fmt
        for x in t.split('\n'):
            x = x.strip()
            if not x: continue
            self.L.append(x if x.endswith(':') or x.startswith('.') else '  ' + x)
    def label(self, l): self.L.append(l + ':')
    def c(self, t): self.L.append('  ; ' + t)
    def ext(self, ls): self.L.extend(ls)

def interleave(main, fillers, start=0, per=1, end=None):
    n = len(main)
    if end is None: end = n
    slots = [[] for _ in range(n)]
    g = len(fillers)
    for k, f in enumerate(fillers):
        pos = start + (k * (end - start)) // max(g, 1)
        slots[min(pos, n - 1)].append(f)
    out = []
    for i, m in enumerate(main):
        out.append(m)
        for f in slots[i]: out.extend(f)
    return out

def auto_lgkm(pre, body, reps=3):
    def sim(lines, q, insert):
        out = []
        for t in lines:
            ins = I(t)
            if ins.kind in ('none', 'label'):
                out.append(t); continue
            if ins.op == 's_waitcnt':
                m = re.search(r'lgkmcnt\((\d+)\)', t)
                if m:
                    k = int(m.group(1)); q[:] = q[len(q) - k:] if k and len(q) > k else ([] if k == 0 else q)
                out.append(t); continue
            touch = ins.rd | ins.wr
            need_k = None
            for idx, dst in enumerate(q):
                if dst & touch and not (ins.kind == 'ds' and not (dst & ins.rd)):
                    k = len(q) - 1 - idx
                    need_k = k if need_k is None else min(need_k, k)
            if need_k is not None:
                k = min(need_k, 15)
                if insert: out.append("  s_waitcnt lgkmcnt(%d)" % k)
                else: raise AssertionError("missing wait before " + t)
                q[:] = q[len(q) - k:] if k else []
            if ins.kind == 'smem': raise AssertionError("smem inside auto_lgkm region")
            if ins.kind == 'ds': q.append(set(ins.wr))
            out.append(t)
        return out
    q = []
    sim(pre, q, True)
    b1 = sim(body, q, True)
    b2 = sim(body, q, True)
    b3 = sim(body, q, True)
    def strip(ls): return [x for x in ls]
    if b2 != b3 or b1 != b2:
        def marks(ls):
            res = {}; i = 0
            for t in ls:
                if i < len(body) and t == body[i]: i += 1
                else:
                    k = int(re.search(r'lgkmcnt\((\d+)\)', t).group(1)); res[i] = min(res.get(i, 99), k)
            return res
        ms = [marks(b) for b in (b1, b2, b3)]
        allm = {}
        for m_ in ms:
            for i, k in m_.items(): allm[i] = min(allm.get(i, 99), k)
        out = []
        for i, t in enumerate(body):
            if i in allm: out.append("  s_waitcnt lgkmcnt(%d)" % allm[i])
            out.append(t)
        b3 = out
    q = []
    sim(pre, q, True)
    for _ in range(reps): sim(b3, q, False)
    return b3

def weave(main, fill, gap_cost=None, first=0, last=None, maxper=1):
    n = len(main)
    if last is None: last = n
    items = [f if isinstance(f, tuple) else (first, f) for f in fill]
    slots = [[] for _ in range(n)]
    m = len(items)
    span = last - first
    pos_prev = first
    for k, (pmin, t) in enumerate(items):
        pos = first + (k * span) // max(m, 1)
        pos = max(pos, pmin, pos_prev)
        pos = min(pos, n - 1)
        slots[pos].append(t); pos_prev = pos
    out = []
    for i, x in enumerate(main):
        out.append(x); out.extend(slots[i])
    return out
```

```python
from asmlib import *

WS_XN   = 0x0000000
WS_ACT2 = 0x0400000
WS_PHIQ = 0x1600000
WS_KVP  = 0x1E00000
WS_PART = 0x2200000
WS_DBG  = 0x4000000

L_ACT = 0
L_QKV = 16384
L_GATE = L_QKV + 6144
L_UP = L_GATE + 7168 + 128
L_STAGE = L_UP + 7168
NSTG = 4
L_WPHI = L_STAGE * NSTG
L_TOTAL_G1 = L_WPHI + 2048

def srd(A, d, base_lo, base_hi, nbytes, off=0):
    if off:
        A.e("s_add_u32 s%d, s%d, 0x%x", d, base_lo, off)
        A.e("s_addc_u32 s%d, s%d, 0", d + 1, base_hi)
        A.e("s_and_b32 s%d, s%d, 0xffff", d + 1, d + 1)
    else:
        A.e("s_mov_b32 s%d, s%d", d, base_lo)
        A.e("s_and_b32 s%d, s%d, 0xffff", d + 1, base_hi)
    A.e("s_mov_b32 s%d, 0x%x", d + 2, nbytes)
    A.e("s_mov_b32 s%d, 0x20000", d + 3)

class G1:
    def __init__(self, NW=8, dump=False, stamps=False, prio=False, order='ft', name='g1_kernel', epi=None, dmaA=0, trace=False, reps=1):
        self.NW = NW; self.TB = 16 // NW * 1 if NW == 8 else 4
        self.TB = 2 if NW == 8 else 4
        self.dump = dump; self.stamps = stamps; self.name = name; self.prio = prio; self.epi = epi
        self.dmaA = dmaA; self.trace = trace; self.reps = reps
        TB = self.TB
        nf = 5 * 4 + TB * 4
        if NW == 8:
            self.ACC = lambda f, t: 96 + (f * TB + t) * 16
            self.SET = [40, 40 + nf]
        else:
            def acc(f, t):
                k = f * TB + t
                return 256 + k * 16 if k < 16 else 192 + (k - 16) * 16
            self.ACC = acc
            self.SET = [40, 40 + nf]
        self.WF = lambda st, f: self.SET[st] + f * 4
        self.XF = lambda st, t: self.SET[st] + 20 + t * 4

    S_PTR = 40
    SRD_ACT = 8; SRD_W = [12, 16, 20, 64, 68]; SRD_OUT = 24
    S_OFF_ACT = 28; S_OFF = [29, 30, 31, 72, 73]; S_STR = [32, 33, 34, 74, 75]
    S_WB = 36
    S_RB = 37
    S_CNT = 38
    S_WAVE = 3; S_M = 4; S_J = 5; S_W3 = 6; S_LDST = [76, 77, 78, 79, 80]; S_LACT = 81
    S_T0 = 82; S_T1 = 83; S_T2 = 84
    V_LANE = 1; V_L16 = 2; V_L16B = 3
    V_WOFF = [4, 5, 6, 7, 8]
    V_RA = 10; V_RG = 11; V_RQ = 12
    V_CA = 13; V_CG = 14; V_CQ = 15
    V_T = 16

    def blocks(self, var):
        if var == 0: return [('K', 1), ('V', 2), ('G', 0), ('G', 1), ('G', 2)]
        return [('Q', 0), ('G', 3), ('G', 4), ('G', 5), ('G', 6)]

    def dma_slots(self, var):
        return (3 if var == 0 else 2) if self.NW == 8 else 5
    def nact(self): return 16 // self.NW

    def prologue(self, A):
        NW = self.NW
        A.e("s_cmp_ge_u32 s2, 256\ns_cbranch_scc1 L_%s_done" % self.name)
        if self.stamps: A.e("s_memrealtime s[96:97]")
        A.e("s_load_dwordx16 s[40:55], s[0:1], 0")
        A.e("s_load_dwordx4 s[56:59], s[0:1], 64")
        A.e("s_load_dwordx2 s[60:61], s[0:1], 80")
        A.e("v_lshrrev_b32 v16, 6, v0")
        A.e("v_and_b32 v%d, 63, v0", self.V_LANE)
        A.e("v_readfirstlane_b32 s%d, v16", self.S_WAVE)
        A.e("s_lshr_b32 s4, s2, 3\ns_and_b32 s4, s4, 7")
        A.e("s_and_b32 s5, s2, 7\ns_lshl_b32 s5, s5, 2\ns_lshr_b32 s7, s2, 6\ns_add_u32 s5, s5, s7")
        A.e("v_lshlrev_b32 v%d, 4, v%d", self.V_L16, self.V_LANE)
        A.e("s_waitcnt lgkmcnt(0)")
        srd(A, self.SRD_ACT, 60, 61, 0x400000, WS_XN)
        if NW == 8:
            A.e("s_and_b32 s%d, s%d, 3", self.S_W3, self.S_WAVE)
        na = self.nact() // 2
        A.e("s_lshl_b32 s%d, s4, 3", self.S_T0)
        if NW == 8: A.e("s_add_u32 s%d, s%d, s%d", self.S_T0, self.S_T0, self.S_WAVE)
        else: A.e("s_lshl_b32 s%d, s%d, 1\ns_add_u32 s%d, s%d, s%d", self.S_T1, self.S_WAVE, self.S_T0, self.S_T0, self.S_T1)
        A.e("s_lshl_b32 s%d, s%d, 16", self.S_OFF_ACT, self.S_T0)
        A.e("s_lshl_b32 s%d, s%d, %d", self.S_LACT, self.S_WAVE, 11 if NW == 8 else 12)
        if NW == 4: A.e("v_add_u32 v%d, 0x10000, v%d", self.V_L16B, self.V_L16)
        L = self.V_LANE; T = self.V_T
        A.e("v_lshrrev_b32 v%d, 5, v%d", T, L)
        A.e("v_bfe_u32 v%d, v%d, 4, 1", T + 1, L)
        A.e("v_bfe_u32 v%d, v%d, 2, 2", T + 2, L)
        A.e("v_and_b32 v%d, 3, v%d", T + 3, L)
        A.e("v_lshl_add_u32 v%d, v%d, 3, v%d", T + 4, T, T + 2)
        A.e("v_mul_u32_u24 v%d, 224, v%d", T + 5, T + 4)
        A.e("v_lshl_add_u32 v%d, v%d, 3, v%d", T + 5, T + 3, T + 5)
        A.e("v_mul_u32_u24 v%d, %d, v%d", T + 6, L_UP - L_GATE, T + 1)
        A.e("v_add_u32 v%d, v%d, v%d", self.V_CG, T + 5, T + 6)
        A.e("v_add_u32 v%d, %d, v%d", self.V_CG, L_GATE, self.V_CG)
        A.e("v_mul_u32_u24 v%d, 192, v%d", T + 5, T + 4)
        A.e("v_lshl_add_u32 v%d, v%d, 3, v%d", T + 5, T + 3, T + 5)
        A.e("v_lshl_add_u32 v%d, v%d, 5, v%d", T + 5, T + 1, T + 5)
        A.e("v_add_u32 v%d, %d, v%d", self.V_CQ, L_QKV, T + 5)
        if NW == 8: A.e("s_lshl_b32 s%d, s%d, 12", self.S_T0, self.S_W3)
        else: A.e("s_lshr_b32 s%d, s%d, 1\ns_lshl_b32 s%d, s%d, 13", self.S_T0, self.S_WAVE, self.S_T0, self.S_T0)
        A.e("v_add_u32 v%d, s%d, v%d", self.V_CA, self.S_T0, self.V_L16)

    def slot_setup(self, A, slot, typ, i_expr):
        T = self.V_T + 8; L = self.V_LANE
        d = self.SRD_W[slot]
        if typ == 'qkv':
            srd(A, d, 42, 43, 1024 * 6144)
            A.e("s_mov_b32 s%d, %d", self.S_STR[slot], 32 * 6144)
            reg, magic, per, rs = L_QKV, 5462, 12, 6144
        else:
            p = 50 if typ == 'gate' else 52
            srd(A, d, p, p + 1, 1024 * 7168)
            A.e("s_mov_b32 s%d, %d", self.S_STR[slot], 32 * 7168)
            reg, magic, per, rs = (L_GATE if typ == 'gate' else L_UP), 4682, 14, 7168
        A.e("s_mov_b32 s%d, 0", self.S_OFF[slot])
        A.e("s_lshl_b32 s%d, s%d, 10", self.S_LDST[slot], i_expr)
        A.e("s_add_u32 s%d, s%d, %d", self.S_LDST[slot], self.S_LDST[slot], reg)
        A.e("s_lshl_b32 s%d, s%d, 6", self.S_T1, i_expr)
        A.e("v_add_u32 v%d, s%d, v%d", T, self.S_T1, L)
        A.e("v_mul_u32_u24 v%d, %d, v%d", T + 1, magic, T)
        A.e("v_lshrrev_b32 v%d, 16, v%d", T + 1, T + 1)
        A.e("v_mul_u32_u24 v%d, %d, v%d", T + 2, per, T + 1)
        A.e("v_sub_u32 v%d, v%d, v%d", T + 2, T, T + 2)
        A.e("v_mul_u32_u24 v%d, %d, v%d", T + 1, rs, T + 1)
        if typ == 'qkv':
            A.e("v_lshrrev_b32 v%d, 2, v%d", T + 3, T + 2)
            A.e("v_lshlrev_b32 v%d, 11, v%d", T + 3, T + 3)
            A.e("v_and_b32 v%d, 3, v%d", T + 2, T + 2)
            A.e("v_lshl_add_u32 v%d, v%d, 4, v%d", T + 1, T + 2, T + 1)
            A.e("v_add_u32 v%d, v%d, v%d", T + 1, T + 3, T + 1)
            A.e("s_lshl_b32 s%d, s5, 6", self.S_T1)
        else:
            A.e("v_lshl_add_u32 v%d, v%d, 4, v%d", T + 1, T + 2, T + 1)
            A.e("s_mul_i32 s%d, s5, 224", self.S_T1)
        A.e("v_add_u32 v%d, s%d, v%d", self.V_WOFF[slot], self.S_T1, T + 1)

    def dma_groups(self, var):
        G = []
        na = self.nact()
        for k in range(na):
            tt, u = k // 2, k % 2
            g = []
            if u == 0:
                g.append("  s_add_u32 m0, s%d, s%d" % (self.S_WB, self.S_LACT) if tt == 0 else
                         "  s_add_u32 m0, m0, 2048")
                g.append("  s_nop 0")
            vo = self.V_L16 if tt == 0 else self.V_L16B
            g.append("  buffer_load_dwordx4 v%d, s[%d:%d], s%d offen%s lds" % (vo, self.SRD_ACT, self.SRD_ACT + 3, self.S_OFF_ACT, " offset:1024" if u else ""))
            if k == na - 1: g.append("  s_add_u32 s%d, s%d, 2048" % (self.S_OFF_ACT, self.S_OFF_ACT))
            G.append(g)
        for sl in range(self.dma_slots(var)):
            d = self.SRD_W[sl]
            G.append(["  s_add_u32 m0, s%d, s%d" % (self.S_WB, self.S_LDST[sl]),
                      "  s_nop 0",
                      "  buffer_load_dwordx4 v%d, s[%d:%d], s%d offen lds" % (self.V_WOFF[sl], d, d + 3, self.S_OFF[sl]),
                      "  s_add_u32 s%d, s%d, s%d" % (self.S_OFF[sl], self.S_OFF[sl], self.S_STR[sl])])
        return G

    def adv_wb(self):
        return ["  s_add_u32 s%d, s%d, %d" % (self.S_WB, self.S_WB, L_STAGE),
                "  s_cmp_eq_u32 s%d, %d" % (self.S_WB, L_STAGE * NSTG),
                "  s_cselect_b32 s%d, 0, s%d" % (self.S_WB, self.S_WB)]

    def reads(self, var, st, u):
        R_ = []
        TB = self.TB
        acts = ["  ds_read_b128 %s, v%d offset:%d" % (vr(self.XF(st, t), 4), self.V_RA, (t * 2 + u) * 1024) for t in range(TB)]
        w = []
        for f, (kind, idx) in enumerate(self.blocks(var)):
            for t in range(2):
                if kind == 'G': vb, off = self.V_RG, (16 * u + 4 * t) * 224 + 32 * idx
                else: vb, off = self.V_RQ, (16 * u + 4 * t) * 192 + 64 * idx
                w.append("  ds_read_b64_tr_b16 %s, v%d offset:%d" % (vr(self.WF(st, f) + 2 * t, 2), vb, off))
        out = [acts[0]] + w[0:2] + acts[1:] + w[2:]
        return out

    def mfmas(self, var, st):
        M = []
        for f, (kind, idx) in enumerate(self.blocks(var)):
            for t in range(self.TB):
                acc = R(self.ACC(f, t), 16)
                wf, xf = vr(self.WF(st, f), 4), vr(self.XF(st, t), 4)
                if kind == 'V': M.append("  v_mfma_f32_32x32x16_bf16 %s, %s, %s, %s" % (acc, xf, wf, acc))
                else: M.append("  v_mfma_f32_32x32x16_bf16 %s, %s, %s, %s" % (acc, wf, xf, acc))
        return M

    def set_read_addr(self):
        return ["  v_add_u32 v%d, s%d, v%d" % (self.V_RA, self.S_RB, self.V_CA),
                "  v_add_u32 v%d, s%d, v%d" % (self.V_RG, self.S_RB, self.V_CG),
                "  v_add_u32 v%d, s%d, v%d" % (self.V_RQ, self.S_RB, self.V_CQ)]
    def adv_rb(self):
        return ["  s_add_u32 s%d, s%d, %d" % (self.S_RB, self.S_RB, L_STAGE),
                "  s_cmp_eq_u32 s%d, %d" % (self.S_RB, L_STAGE * NSTG),
                "  s_cselect_b32 s%d, 0, s%d" % (self.S_RB, self.S_RB)]

    def variant(self, A, var):
        NW = self.NW; nm = self.name
        nd = self.nact() + self.dma_slots(var)
        if NW == 8:
            if var == 0:
                for sl, typ in enumerate(('gate', 'up', 'qkv')): self.slot_setup(A, sl, typ, self.S_W3)
            else:
                lab = "L_%s_w7" % nm
                A.e("s_cmp_eq_u32 s%d, 3\ns_cbranch_scc1 %s", self.S_W3, lab)
                A.e("s_add_u32 s%d, s%d, 4", self.S_T2, self.S_W3)
                self.slot_setup(A, 0, 'gate', self.S_T2); self.slot_setup(A, 1, 'up', self.S_T2)
                A.e("s_branch %s_x", lab)
                A.label(lab)
                A.e("s_mov_b32 s%d, 4", self.S_T2); self.slot_setup(A, 0, 'qkv', self.S_T2)
                A.e("s_mov_b32 s%d, 5", self.S_T2); self.slot_setup(A, 1, 'qkv', self.S_T2)
                A.label(lab + "_x")
        else:
            allw = [('gate', i) for i in range(7)] + [('up', i) for i in range(7)] + [('qkv', i) for i in range(6)]
            for th in (0, 1):
                lab = "L_%s_v%d_th%d" % (nm, var, th)
                if th == 0: A.e("s_cmp_ge_u32 s%d, 2\ns_cbranch_scc1 L_%s_v%d_th1", self.S_WAVE, nm, var)
                else: A.label(lab)
                w = var + 2 * th
                for sl in range(5):
                    typ, i = allw[sl * 4 + w]
                    A.e("s_mov_b32 s%d, %d", self.S_T2, i); self.slot_setup(A, sl, typ, self.S_T2)
                if th == 0: A.e("s_branch L_%s_v%d_thx", nm, var)
            A.label("L_%s_v%d_thx" % (nm, var))
        A.e("s_mov_b32 s%d, 0", self.S_WB)
        for st in range(NSTG):
            for g in self.dma_groups(var): A.ext(g)
            A.ext(self.adv_wb())
        for f in range(5):
            for t in range(self.TB):
                b = self.ACC(f, t)
                for r in range(16):
                    A.e("v_accvgpr_write_b32 a%d, 0" % (b + r - 256) if b >= 256 else "v_mov_b32 v%d, 0" % (b + r))
        A.e("s_mov_b32 s%d, 0", self.S_RB)
        A.ext(self.set_read_addr())
        A.e("s_waitcnt vmcnt(%d)", 3 * nd)
        A.e("s_barrier")
        A.ext(self.reads(var, 0, 0))
        A.e("s_mov_b32 s%d, %d", self.S_CNT, 32 * self.reps)
        if self.stamps:
            A.e("s_memtime s[86:87]\ns_memrealtime s[92:93]")
        if self.prio and var == 1: A.e("s_setprio 1")
        A.e("s_waitcnt lgkmcnt(0)")
        lab = "L_%s_loop%d" % (nm, var)
        A.L.append(".p2align 6")
        A.label(lab)
        if self.trace: A.e("s_memrealtime s[98:99]")
        nm_ = 5 * self.TB
        groups = self.dma_groups(var)
        gA = groups[:self.dmaA]; gB = groups[self.dmaA:]
        fill = [[r] for r in self.reads(var, 1, 1)]
        nrd = len(fill)
        fill.append(self.adv_rb()); fill.append(self.set_read_addr())
        if gA:
            fill = merge_groups(fill, gA)
        A.ext(interleave(self.mfmas(var, 0), fill, start=0, end=nm_ - 1))
        A.e("s_waitcnt vmcnt(%d) lgkmcnt(0)", 2 * nd + (0 if not gA else -0))
        A.e("s_barrier")
        if self.trace: A.e("s_and_b32 m0, s%d, 63\ns_nop 3\nv_writelane_b32 v18, s98, m0" % (self.S_CNT,))
        fill = [[r] for r in self.reads(var, 0, 0)]
        fill = merge_groups(fill, gB)
        fill.append(self.adv_wb() + ["  s_sub_u32 s%d, s%d, 1" % (self.S_CNT, self.S_CNT), "  s_cmp_lg_u32 s%d, 0" % self.S_CNT])
        A.ext(interleave(self.mfmas(var, 1), fill, start=0, end=nm_ - 1))
        A.e("s_waitcnt lgkmcnt(0)")
        A.e("s_cbranch_scc1 %s", lab)
        if self.stamps:
            A.e("s_memtime s[88:89]\ns_memrealtime s[94:95]\ns_waitcnt lgkmcnt(0)\ns_sub_u32 s88, s88, s86")
        A.e("s_waitcnt vmcnt(0)")
        A.e("s_nop 15")
        if self.dump: self.dump_acc(A, var)
        if self.stamps: self.store_stamp(A)
        if self.trace:
            srd(A, self.SRD_OUT, 60, 61, 0x100000, 0x3E00000)
            A.e("s_mul_i32 s%d, s2, %d", self.S_T0, self.NW)
            A.e("s_add_u32 s%d, s%d, s%d", self.S_T0, self.S_T0, self.S_WAVE)
            A.e("s_lshl_b32 s%d, s%d, 8", self.S_T0, self.S_T0)
            A.e("v_lshlrev_b32 v17, 2, v%d", self.V_LANE)
            A.e("buffer_store_dword v18, v17, s[%d:%d], s%d offen", self.SRD_OUT, self.SRD_OUT + 3, self.S_T0)
        if self.epi: self.epi(self, A, var)
        A.e("s_branch L_%s_done", nm)

    def dump_acc(self, A, var):
        srd(A, self.SRD_OUT, 60, 61, 0x8000000, WS_DBG)
        nb = 5 * self.TB
        A.e("s_mul_i32 s%d, s2, %d", self.S_T0, self.NW)
        A.e("s_add_u32 s%d, s%d, s%d", self.S_T0, self.S_T0, self.S_WAVE)
        A.e("s_mul_i32 s%d, s%d, %d", self.S_T0, self.S_T0, nb * 4096)
        A.e("v_lshlrev_b32 v16, 2, v%d", self.V_LANE)
        for f in range(5):
            for t in range(self.TB):
                b = self.ACC(f, t)
                for r in range(16):
                    A.e("buffer_store_dword %s, v16, s[%d:%d], s%d offen offset:%d", R(b + r), self.SRD_OUT, self.SRD_OUT + 3, self.S_T0, r * 256)
                A.e("s_add_u32 s%d, s%d, 4096", self.S_T0, self.S_T0)
        A.e("s_waitcnt vmcnt(0)")

    def store_stamp(self, A):
        srd(A, self.SRD_OUT, 60, 61, 0x100000, 0x3F00000)
        A.e("s_mul_i32 s%d, s2, %d", self.S_T0, self.NW)
        A.e("s_add_u32 s%d, s%d, s%d", self.S_T0, self.S_T0, self.S_WAVE)
        A.e("s_lshl_b32 s%d, s%d, 4", self.S_T0, self.S_T0)
        A.e("v_mov_b32 v20, s88\nv_mov_b32 v21, s92\nv_mov_b32 v22, s94\nv_mov_b32 v23, s96\nv_mov_b32 v17, 0")
        A.e("v_cmp_eq_u32 vcc, 0, v%d", self.V_LANE)
        A.e("s_and_saveexec_b64 s[90:91], vcc")
        A.e("buffer_store_dwordx4 v[20:23], v17, s[%d:%d], s%d offen", self.SRD_OUT, self.SRD_OUT + 3, self.S_T0)
        A.e("s_mov_b64 exec, s[90:91]")

    def body(self):
        A = Asm()
        nm = self.name
        self.prologue(A)
        if self.NW == 8: A.e("s_cmp_ge_u32 s%d, 4", self.S_WAVE)
        else: A.e("s_bitcmp1_b32 s%d, 0", self.S_WAVE)
        A.e("s_cbranch_scc1 L_%s_var1", nm)
        self.variant(A, 0)
        A.label("L_%s_var1" % nm)
        self.variant(A, 1)
        A.label("L_%s_done" % nm)
        A.e("s_endpgm")
        return fix_hazards(A.L)

    def nvgpr(self): return (256, 256) if self.NW == 8 else (512, 256)

def merge_groups(a_, b_):
    if not b_: return a_
    out = []; na, nb = len(a_), len(b_); ia = ib = 0
    while ia < na or ib < nb:
        if ib * na <= ia * nb and ib < nb or ia >= na:
            out.append(b_[ib]); ib += 1
        else:
            out.append(a_[ia]); ia += 1
    return out

def kernel_text(name, body, nv, acc, nsgpr=102):
    L = [".text", ".globl %s" % name, ".p2align 8", ".type %s,@function" % name, "%s:" % name] + body
    return L
def kernel_desc(name, nv, acc, nsgpr=102):
    return ['.amdhsa_kernel %s' % name, "  .amdhsa_next_free_vgpr %d" % nv, "  .amdhsa_next_free_sgpr %d" % nsgpr,
            "  .amdhsa_accum_offset %d" % acc, "  .amdhsa_group_segment_fixed_size 0", "  .amdhsa_kernarg_size 88",
            "  .amdhsa_user_sgpr_count 2", "  .amdhsa_user_sgpr_kernarg_segment_ptr 1",
            "  .amdhsa_system_sgpr_workgroup_id_x 1", "  .amdhsa_float_denorm_mode_32 3", ".end_amdhsa_kernel"]

def make_file(kernels):
    L = []
    for (name, body, nv, acc, grid, block, lds) in kernels:
        L.append("; @launch kernel=%s grid=(%d,1,1) block=(%d,1,1) lds=%d" % (name, grid, block, lds))
    L.append('.amdgcn_target "amdgcn-amd-amdhsa--gfx950"')
    for (name, body, nv, acc, grid, block, lds) in kernels:
        L += kernel_text(name, body, nv, acc)
    L.append('.section .rodata,"a"')
    for (name, body, nv, acc, grid, block, lds) in kernels:
        L.append(".p2align 6")
        L += kernel_desc(name, nv, acc)
    return "\n".join(L) + "\n"

if __name__ == '__main__':
    import sys
    nw = int(sys.argv[2]) if len(sys.argv) > 2 else 8
    g = G1(NW=nw, dump=True, stamps=True)
    nv, acc = g.nvgpr()
    open(sys.argv[1], 'w').write(make_file([(g.name, g.body(), nv, acc, 256, 64 * nw, L_TOTAL_G1)]))
```

```python
from asmlib import *
from g1 import srd, make_file, kernel_desc, kernel_text

WS_XN   = 0x0000000
WS_ACT2 = 0x0400000
WS_PHIQ = 0x1600000
WS_KVP  = 0x1E00000
WS_PART = 0x5000000
WS_DBG  = 0x4000000
WS_STAMP = 0x3F00000
ACT2_KS = 144

L_ACT = 0
L_QKV = 16384
L_GATE = L_QKV + 6144
L_UP = L_GATE + 7168
L_STAGE = L_UP + 7168
NSTG = 4
L_WPHI = L_STAGE * NSTG
L_TOTAL_G1 = L_WPHI + 2048

class G1C:
    def __init__(self, dump=False, stamps=False, name='g1_kernel', epi=True, order='snake', LA=3, barf=7, prio=False):
        self.dump = dump; self.stamps = stamps; self.name = name; self.epi = epi; self.order = order
        self.LA = LA; self.barf = barf; self.prio = prio
    SRD_ACT = 8; SRD_W = [12, 16, 20]; SRD_OUT = 24
    S_OFF_ACT = 28; S_OFF = [29, 30, 31]; S_STR = [32, 33, 34]
    S_WB = 36; S_RD = 37; S_CNT = 38; S_RB = 39
    S_WAVE = 3; S_M = 4; S_J = 5; S_W3 = 6; S_Q = 7
    S_LDST = [64, 65, 66]; S_LACT = 67
    S_T0 = 68; S_T1 = 69; S_T2 = 70; S_T3 = 71
    SRD_O2 = 72
    S_C = 76
    S_KP = 77; S_KN = 78
    V_LANE = 1; V_L16 = 2; V_L16B = 3
    V_WOFF = [4, 5, 6]
    V_RX = 7; V_RG = 8; V_RS = 9; V_RQ0 = 10; V_RQ1 = 11
    V_T = 16
    XS = [40, 56]; WR = 72; NRING = 5
    def ACC(self, f, t): return 96 + (f * 4 + t) * 4
    def XF(self, st, t): return self.XS[st] + 4 * t
    def WF(self, f): return self.WR + 4 * (f % self.NRING)
    def blocks(self, var):
        if var == 0:
            return [('K', self.V_RQ0, 64), ('K', self.V_RQ1, 64), ('V', self.V_RQ0, 128), ('V', self.V_RQ1, 128),
                    ('g', self.V_RG, 0), ('u', self.V_RG, 0), ('g', self.V_RG, 32), ('u', self.V_RG, 32),
                    ('g', self.V_RS, 0), ('u', self.V_RS, 0)]
        return [('Q', self.V_RQ0, 0), ('Q', self.V_RQ1, 0)] + \
               [(k, self.V_RG, 32 * b) for b in (2, 3, 4, 5) for k in ('g', 'u')]
    def nd(self, var): return 2 + (3 if var == 0 else 2)

    def prologue(self, A):
        nm = self.name
        A.e("s_cmp_ge_u32 s2, 256\ns_cbranch_scc1 L_%s_done" % nm)
        if self.stamps: A.e("s_memrealtime s[96:97]")
        A.e("s_load_dwordx16 s[40:55], s[0:1], 0")
        A.e("s_load_dwordx4 s[56:59], s[0:1], 64")
        A.e("s_load_dwordx2 s[60:61], s[0:1], 80")
        A.e("v_lshrrev_b32 v16, 6, v0")
        A.e("v_and_b32 v%d, 63, v0", self.V_LANE)
        A.e("v_readfirstlane_b32 s%d, v16", self.S_WAVE)
        A.e("s_lshr_b32 s4, s2, 3\ns_and_b32 s4, s4, 7")
        A.e("s_and_b32 s5, s2, 7\ns_lshl_b32 s5, s5, 2\ns_lshr_b32 s7, s2, 6\ns_add_u32 s5, s5, s7")
        A.e("s_and_b32 s7, s5, 1")
        A.e("v_lshlrev_b32 v%d, 4, v%d", self.V_L16, self.V_LANE)
        A.e("v_add_u32 v%d, 0x8000, v%d", self.V_L16B, self.V_L16)
        A.e("s_and_b32 s%d, s%d, 3", self.S_W3, self.S_WAVE)
        A.e("s_lshl_b32 s%d, s4, 4", self.S_T0)
        A.e("s_lshl_b32 s%d, s%d, 1", self.S_T1, self.S_WAVE)
        A.e("s_add_u32 s%d, s%d, s%d", self.S_T0, self.S_T0, self.S_T1)
        A.e("s_lshl_b32 s%d, s%d, 15", self.S_OFF_ACT, self.S_T0)
        A.e("s_lshl_b32 s%d, s%d, 11", self.S_LACT, self.S_WAVE)
        L = self.V_LANE; T = self.V_T
        A.e("v_lshrrev_b32 v%d, 4, v%d", T, L)
        A.e("v_bfe_u32 v%d, v%d, 2, 2", T + 2, L)
        A.e("v_and_b32 v%d, 3, v%d", T + 3, L)
        A.e("v_lshl_add_u32 v%d, v%d, 2, v%d", T + 4, T, T + 2)
        A.e("v_mul_u32_u24 v%d, 224, v%d", T + 5, T + 4)
        A.e("v_lshl_add_u32 v%d, v%d, 3, v%d", T + 5, T + 3, T + 5)
        A.e("v_add_u32 v%d, %d, v%d", T + 5, L_GATE, T + 5)
        A.e("s_lshl_b32 s%d, s7, 5", self.S_T0)
        A.e("v_add_u32 v%d, s%d, v%d", self.V_RG, self.S_T0, T + 5)
        A.e("s_cmp_eq_u32 s7, 0\ns_cselect_b32 s%d, 192, 0", self.S_T0)
        A.e("v_add_u32 v%d, s%d, v%d", self.V_RS, self.S_T0, T + 5)
        A.e("v_mul_u32_u24 v%d, 192, v%d", T + 5, T + 4)
        A.e("v_lshl_add_u32 v%d, v%d, 3, v%d", T + 5, T + 3, T + 5)
        A.e("v_add_u32 v%d, %d, v%d", T + 5, L_QKV, T + 5)
        A.e("v_and_b32 v%d, 1, v%d", T + 6, T)
        A.e("v_lshl_add_u32 v%d, v%d, 5, v%d", self.V_RQ0, T + 6, T + 5)
        A.e("v_xor_b32 v%d, 1, v%d", T + 6, T + 6)
        A.e("v_lshl_add_u32 v%d, v%d, 5, v%d", self.V_RQ1, T + 6, T + 5)
        A.e("s_lshl_b32 s%d, s%d, 12", self.S_T0, self.S_W3)
        A.e("v_add_u32 v%d, s%d, v%d", self.V_RX, self.S_T0, self.V_L16)
        A.e("s_waitcnt lgkmcnt(0)")
        srd(A, self.SRD_ACT, 60, 61, 0x400000, WS_XN)

    def slot_setup(self, A, slot, typ, i_expr):
        T = self.V_T + 8; L = self.V_LANE
        d = self.SRD_W[slot]
        if typ == 'qkv':
            srd(A, d, 42, 43, 1024 * 6144)
            A.e("s_mov_b32 s%d, %d", self.S_STR[slot], 32 * 6144)
            reg, magic, per, rs = L_QKV, 5462, 12, 6144
        else:
            p = 50 if typ == 'gate' else 52
            srd(A, d, p, p + 1, 1024 * 7168)
            A.e("s_mov_b32 s%d, %d", self.S_STR[slot], 32 * 7168)
            reg, magic, per, rs = (L_GATE if typ == 'gate' else L_UP), 4682, 14, 7168
        A.e("s_mov_b32 s%d, 0", self.S_OFF[slot])
        A.e("s_lshl_b32 s%d, s%d, 10", self.S_LDST[slot], i_expr)
        A.e("s_add_u32 s%d, s%d, %d", self.S_LDST[slot], self.S_LDST[slot], reg)
        A.e("s_lshl_b32 s%d, s%d, 6", self.S_T1, i_expr)
        A.e("v_add_u32 v%d, s%d, v%d", T, self.S_T1, L)
        A.e("v_mul_u32_u24 v%d, %d, v%d", T + 1, magic, T)
        A.e("v_lshrrev_b32 v%d, 16, v%d", T + 1, T + 1)
        A.e("v_mul_u32_u24 v%d, %d, v%d", T + 2, per, T + 1)
        A.e("v_sub_u32 v%d, v%d, v%d", T + 2, T, T + 2)
        if typ == 'qkv':
            A.e("v_bfe_u32 v%d, v%d, 2, 1", T + 3, T + 1)
            A.e("v_lshlrev_b32 v%d, 1, v%d", T + 3, T + 3)
            A.e("v_xor_b32 v%d, v%d, v%d", T + 2, T + 2, T + 3)
            A.e("v_mul_u32_u24 v%d, 6144, v%d", T + 1, T + 1)
            A.e("v_lshrrev_b32 v%d, 2, v%d", T + 3, T + 2)
            A.e("v_lshlrev_b32 v%d, 11, v%d", T + 3, T + 3)
            A.e("v_and_b32 v%d, 3, v%d", T + 2, T + 2)
            A.e("v_lshl_add_u32 v%d, v%d, 4, v%d", T + 1, T + 2, T + 1)
            A.e("v_add_u32 v%d, v%d, v%d", T + 1, T + 3, T + 1)
            A.e("s_lshl_b32 s%d, s5, 6", self.S_T1)
        else:
            A.e("v_mul_u32_u24 v%d, %d, v%d", T + 1, rs, T + 1)
            A.e("v_lshl_add_u32 v%d, v%d, 4, v%d", T + 1, T + 2, T + 1)
            A.e("s_mul_i32 s%d, s5, 224", self.S_T1)
        A.e("v_add_u32 v%d, s%d, v%d", self.V_WOFF[slot], self.S_T1, T + 1)

    def dma_flat(self, var):
        G = []
        G += ["  s_add_u32 m0, s%d, s%d" % (self.S_WB, self.S_LACT),
              "  buffer_load_dwordx4 v%d, s[%d:%d], s%d offen lds" % (self.V_L16, self.SRD_ACT, self.SRD_ACT + 3, self.S_OFF_ACT),
              "  s_add_u32 m0, m0, 1024",
              "  buffer_load_dwordx4 v%d, s[%d:%d], s%d offen lds" % (self.V_L16B, self.SRD_ACT, self.SRD_ACT + 3, self.S_OFF_ACT),
              "  s_add_u32 s%d, s%d, 1024" % (self.S_OFF_ACT, self.S_OFF_ACT)]
        for sl in range(3 if var == 0 else 2):
            d = self.SRD_W[sl]
            G += ["  s_add_u32 m0, s%d, s%d" % (self.S_WB, self.S_LDST[sl]),
                  "  buffer_load_dwordx4 v%d, s[%d:%d], s%d offen lds" % (self.V_WOFF[sl], d, d + 3, self.S_OFF[sl]),
                  "  s_add_u32 s%d, s%d, s%d" % (self.S_OFF[sl], self.S_OFF[sl], self.S_STR[sl])]
        G += ["  s_add_u32 s%d, s%d, %d" % (self.S_WB, self.S_WB, L_STAGE),
              "  s_cmp_eq_u32 s%d, %d" % (self.S_WB, L_STAGE * NSTG),
              "  s_cselect_b32 s%d, 0, s%d" % (self.S_WB, self.S_WB)]
        return G

    def rd_w(self, var, f):
        kind, vb, imm = self.blocks(var)[f]
        out = []
        for t in range(2):
            if kind in 'gu': off = 16 * t * 224 + imm + (L_UP - L_GATE if kind == 'u' else 0)
            else: off = 16 * t * 192 + imm
            out.append("  ds_read_b64_tr_b16 %s, v%d offset:%d" % (vr(self.WF(f) + 2 * t, 2), vb, off))
        return out
    def rd_x(self, st, t):
        return ["  ds_read_b128 %s, v%d offset:%d" % (vr(self.XF(st, t), 4), self.V_RX, t * 1024)]
    def adv_read(self, var):
        regs = [self.V_RX, self.V_RG, self.V_RQ0, self.V_RQ1] + ([self.V_RS] if var == 0 else [])
        out = ["  s_add_u32 s%d, s%d, %d" % (self.S_RB, self.S_RB, L_STAGE),
               "  s_cmp_eq_u32 s%d, %d" % (self.S_RB, L_STAGE * NSTG),
               "  s_cselect_b32 s%d, 0, s%d" % (self.S_RB, self.S_RB),
               "  s_cselect_b32 s%d, s%d, s%d" % (self.S_RD, self.S_KN, self.S_KP)]
        out += ["  v_add_u32 v%d, s%d, v%d" % (r_, self.S_RD, r_) for r_ in regs]
        return out

    def mfma(self, var, f, t, st):
        kind = self.blocks(var)[f][0]
        acc = vr(self.ACC(f, t), 4); wf = vr(self.WF(f), 4); xf = vr(self.XF(st, t), 4)
        if kind == 'V': return "  v_mfma_f32_16x16x32_bf16 %s, %s, %s, %s" % (acc, xf, wf, acc)
        return "  v_mfma_f32_16x16x32_bf16 %s, %s, %s, %s" % (acc, wf, xf, acc)

    def stage(self, var, st, last_extra):
        LA, bf = self.LA, self.barf
        nd = self.nd(var)
        out = []
        dma = self.dma_flat(var)
        post = []
        for f in range(10):
            ts = range(4) if (self.order != 'snake' or f % 2 == 0) else range(3, -1, -1)
            m = [self.mfma(var, f, t, st) for t in ts]
            fill = []
            if f == bf:
                out.append("  s_waitcnt vmcnt(%d) lgkmcnt(0)" % (2 * nd))
                out.append("  s_barrier")
            fn = f + LA
            if fn < 10:
                assert f < bf or True
                fill += self.rd_w(var, fn)
            if f >= bf:
                k = f - bf; nrem = 10 - bf
                wl = [w for w in range(LA) if (w * nrem) // LA == k] if LA >= nrem else [w for w in range(LA) if w == k]
                xl = [x for x in range(4) if (x * nrem) // 4 == k]
                for x in xl: fill += self.rd_x(1 - st, x)
                for w in wl: fill += self.rd_w(var, w)
                lo = (len(dma) * k) // nrem; hi = (len(dma) * (k + 1)) // nrem
                fill = merge_flat(fill, dma[lo:hi])
            if f == 9: fill += last_extra
            if f == bf - 1: fill += self.adv_read(var)
            per = [[] for _ in range(4)]
            for i, x in enumerate(fill): per[(i * 4) // max(len(fill), 1)].append(x)
            for i in range(4):
                out.append(m[i]); out += per[i]
        return out

    def variant(self, A, var):
        nm = self.name; nd = self.nd(var)
        if var == 0:
            for sl, typ in enumerate(('gate', 'up', 'qkv')): self.slot_setup(A, sl, typ, self.S_W3)
            srd(A, self.SRD_OUT, 44, 45, 65536)
            A.e("s_lshl_b32 s%d, s5, 11", self.S_T0)
            A.e("s_lshl_b32 s%d, s%d, 10", self.S_T1, self.S_W3)
            A.e("s_and_b32 s%d, s%d, 1024", self.S_T1, self.S_T1)
            A.e("s_add_u32 s%d, s%d, s%d", self.S_T0, self.S_T0, self.S_T1)
            A.e("s_add_u32 m0, s%d, %d", self.S_T1, L_WPHI)
            A.e("s_nop 0")
            A.e("buffer_load_dwordx4 v%d, s[%d:%d], s%d offen lds", self.V_L16, self.SRD_OUT, self.SRD_OUT + 3, self.S_T0)
        else:
            lab = "L_%s_w7" % nm
            A.e("s_cmp_eq_u32 s%d, 3\ns_cbranch_scc1 %s", self.S_W3, lab)
            A.e("s_add_u32 s%d, s%d, 4", self.S_T2, self.S_W3)
            self.slot_setup(A, 0, 'gate', self.S_T2); self.slot_setup(A, 1, 'up', self.S_T2)
            A.e("s_branch %s_x", lab)
            A.label(lab)
            A.e("s_mov_b32 s%d, 4", self.S_T2); self.slot_setup(A, 0, 'qkv', self.S_T2)
            A.e("s_mov_b32 s%d, 5", self.S_T2); self.slot_setup(A, 1, 'qkv', self.S_T2)
            A.label(lab + "_x")
        A.e("s_mov_b32 s%d, 0", self.S_WB)
        for st in range(NSTG):
            for x in self.dma_flat(var):
                A.L.append(x)
        for k in range(96, 256): A.e("v_mov_b32 v%d, 0", k)
        A.e("s_mov_b32 s%d, 0", self.S_RB)
        A.e("s_mov_b32 s%d, %d\ns_mov_b32 s%d, 0x%x", self.S_KP, L_STAGE, self.S_KN, (-3 * L_STAGE) & 0xffffffff)
        A.e("s_waitcnt vmcnt(%d)", 3 * nd)
        A.e("s_barrier")
        pre = []
        LA, bf = self.LA, self.barf
        nrem = 10 - bf
        for k in range(nrem):
            wl = [w for w in range(LA) if (w * nrem) // LA == k] if LA >= nrem else [w for w in range(LA) if w == k]
            xl = [x for x in range(4) if (x * nrem) // 4 == k]
            for x in xl: pre += self.rd_x(0, x)
            for w in wl: pre += self.rd_w(var, w)
        A.ext(pre)
        A.e("s_mov_b32 s%d, 16", self.S_CNT)
        if self.stamps: A.e("s_memtime s[86:87]\ns_memrealtime s[92:93]\ns_waitcnt lgkmcnt(0)")
        if self.prio and var == 1: A.e("s_setprio 1")
        lab = "L_%s_loop%d" % (nm, var)
        body = self.stage(var, 0, []) + self.stage(var, 1, ["  s_sub_u32 s%d, s%d, 1" % (self.S_CNT, self.S_CNT), "  s_cmp_lg_u32 s%d, 0" % self.S_CNT])
        body = auto_lgkm(pre, body)
        A.L.append(".p2align 6")
        A.label(lab)
        A.ext(body)
        A.e("s_cbranch_scc1 %s", lab)
        if self.prio and var == 1: A.e("s_setprio 0")
        if self.stamps:
            A.e("s_memtime s[88:89]\ns_memrealtime s[94:95]\ns_waitcnt lgkmcnt(0)\ns_sub_u32 s88, s88, s86")
        A.e("s_waitcnt vmcnt(0) lgkmcnt(0)")
        A.e("s_nop 7")
        if self.dump: self.dump_acc(A, var)
        if self.epi:
            from g1epi import epilogue
            epilogue(self, A, var)
        if self.stamps: self.store_stamp(A)
        A.e("s_branch L_%s_done", nm)

    def dump_acc(self, A, var):
        srd(A, self.SRD_OUT, 60, 61, 0x8000000, WS_DBG)
        A.e("s_mul_i32 s%d, s2, 8", self.S_T0)
        A.e("s_add_u32 s%d, s%d, s%d", self.S_T0, self.S_T0, self.S_WAVE)
        A.e("s_mul_i32 s%d, s%d, %d", self.S_T0, self.S_T0, 40 * 1024)
        A.e("v_lshlrev_b32 v16, 2, v%d", self.V_LANE)
        for f in range(10):
            for t in range(4):
                b = self.ACC(f, t)
                for r in range(4):
                    A.e("buffer_store_dword v%d, v16, s[%d:%d], s%d offen offset:%d", b + r, self.SRD_OUT, self.SRD_OUT + 3, self.S_T0, r * 256)
                A.e("s_add_u32 s%d, s%d, 1024", self.S_T0, self.S_T0)
        A.e("s_waitcnt vmcnt(0)")

    def store_stamp(self, A):
        A.e("s_waitcnt vmcnt(0)\ns_memrealtime s[98:99]\ns_waitcnt lgkmcnt(0)")
        srd(A, self.SRD_OUT, 60, 61, 0x100000, WS_STAMP)
        A.e("s_mul_i32 s%d, s2, 8", self.S_T0)
        A.e("s_add_u32 s%d, s%d, s%d", self.S_T0, self.S_T0, self.S_WAVE)
        A.e("s_lshl_b32 s%d, s%d, 5", self.S_T0, self.S_T0)
        A.e("v_mov_b32 v20, s88\nv_mov_b32 v21, s92\nv_mov_b32 v22, s94\nv_mov_b32 v23, s96\nv_mov_b32 v17, 0\nv_mov_b32 v24, s98")
        A.e("v_cmp_eq_u32 vcc, 0, v%d", self.V_LANE)
        A.e("s_and_saveexec_b64 s[90:91], vcc")
        A.e("buffer_store_dwordx4 v[20:23], v17, s[%d:%d], s%d offen", self.SRD_OUT, self.SRD_OUT + 3, self.S_T0)
        A.e("buffer_store_dword v24, v17, s[%d:%d], s%d offen offset:16", self.SRD_OUT, self.SRD_OUT + 3, self.S_T0)
        A.e("s_mov_b64 exec, s[90:91]")

    def body(self):
        A = Asm()
        nm = self.name
        self.prologue(A)
        A.e("s_cmp_ge_u32 s%d, 4", self.S_WAVE)
        A.e("s_cbranch_scc1 L_%s_var1", nm)
        self.variant(A, 0)
        A.label("L_%s_var1" % nm)
        self.variant(A, 1)
        A.label("L_%s_done" % nm)
        A.e("s_endpgm")
        return fix_hazards(A.L)

def merge_flat(a_, b_):
    if not b_: return a_
    if not a_: return b_
    out = []; na, nb = len(a_), len(b_); ia = ib = 0
    while ia < na or ib < nb:
        if (ib * na <= ia * nb and ib < nb) or ia >= na:
            out.append(b_[ib]); ib += 1
        else:
            out.append(a_[ia]); ia += 1
    return out

if __name__ == '__main__':
    import sys
    g = G1C(dump=True, stamps=True, epi=False)
    open(sys.argv[1], 'w').write(make_file([(g.name, g.body(), 256, 256, 256, 512, L_TOTAL_G1)]))
```

```python
from asmlib import *
from g1 import srd, make_file
from g1c import (WS_XN, WS_ACT2, WS_PHIQ, WS_KVP, WS_PART, WS_DBG, WS_STAMP, ACT2_KS, L_ACT, L_QKV, L_GATE, L_UP, L_STAGE, NSTG,
                 L_WPHI, L_TOTAL_G1, merge_flat)

class G1D:
    def __init__(self, dump=False, stamps=False, name='g1_kernel', epi=True, order='snake', fragA=True, last=72, dmapos=0):
        self.dump = dump; self.stamps = stamps; self.name = name; self.epi = epi; self.order = order
        self.fragA = fragA; self.last = last; self.dmapos = dmapos
    SRD_ACT = 8; SRD_W = [12, 16, 20, 64, 68]; SRD_OUT = 24
    S_OFF_ACT = 28; S_OFF = [29, 30, 31, 72, 73]; S_STR = [32, 33, 34, 74, 75]
    S_WB = 36; S_RD = 37; S_CNT = 38; S_RB = 39
    S_WAVE = 3; S_M = 4; S_J = 5; S_TH = 6; S_Q = 7
    S_LDST = [76, 77, 78, 79, 80]; S_LACT = 81
    S_T0 = 82; S_T1 = 83; S_T2 = 84; S_T3 = 85
    S_KP = 62; S_KN = 63
    V_LANE = 1; V_L16K = [2, 3, 4, 5]
    V_WOFF = [6, 7, 8, 9, 10]
    V_RX = 11; V_RG = 12; V_RS = 13; V_RQ0 = 14; V_RQ1 = 15
    V_T = 16
    def XF(self, st, t):
        return (256 + 112 + st * 32 + 4 * t) if self.fragA else (48 + st * 32 + 4 * t)
    def WF(self, st, f):
        return (256 + 176 + st * 40 + 4 * f) if self.fragA else (112 + st * 40 + 4 * f)
    def ACC(self, f, t):
        k = f * 8 + t
        if self.fragA:
            return 48 + 4 * k if k < 52 else 256 + 4 * (k - 52)
        return 256 + 4 * k if k < 64 else 192 + 4 * (k - 64)
    def blocks(self, var):
        if var == 0:
            return [('K', self.V_RQ0, 64), ('K', self.V_RQ1, 64), ('V', self.V_RQ0, 128), ('V', self.V_RQ1, 128),
                    ('g', self.V_RG, 0), ('u', self.V_RG, 0), ('g', self.V_RG, 32), ('u', self.V_RG, 32),
                    ('g', self.V_RS, 0), ('u', self.V_RS, 0)]
        return [('Q', self.V_RQ0, 0), ('Q', self.V_RQ1, 0)] + \
               [(k, self.V_RG, 32 * b) for b in (2, 3, 4, 5) for k in ('g', 'u')]
    ND = 9

    def prologue(self, A):
        nm = self.name
        A.e("s_cmp_ge_u32 s2, 256\ns_cbranch_scc1 L_%s_done" % nm)
        if self.stamps: A.e("s_memrealtime s[96:97]")
        A.e("s_load_dwordx16 s[40:55], s[0:1], 0")
        A.e("s_load_dwordx4 s[56:59], s[0:1], 64")
        A.e("s_load_dwordx2 s[60:61], s[0:1], 80")
        A.e("v_lshrrev_b32 v16, 6, v0")
        A.e("v_and_b32 v%d, 63, v0", self.V_LANE)
        A.e("v_readfirstlane_b32 s%d, v16", self.S_WAVE)
        A.e("s_lshr_b32 s4, s2, 3\ns_and_b32 s4, s4, 7")
        A.e("s_and_b32 s5, s2, 7\ns_lshl_b32 s5, s5, 2\ns_lshr_b32 s7, s2, 6\ns_add_u32 s5, s5, s7")
        A.e("s_and_b32 s7, s5, 1")
        L = self.V_LANE; T = self.V_T
        for k in range(4):
            A.e("v_lshlrev_b32 v%d, 4, v%d", self.V_L16K[k], L)
            if k: A.e("v_add_u32 v%d, 0x%x, v%d", self.V_L16K[k], k * 32768, self.V_L16K[k])
        A.e("s_lshr_b32 s%d, s%d, 1", self.S_TH, self.S_WAVE)
        A.e("s_lshl_b32 s%d, s4, 4", self.S_T0)
        A.e("s_lshl_b32 s%d, s%d, 2", self.S_T1, self.S_WAVE)
        A.e("s_add_u32 s%d, s%d, s%d", self.S_T0, self.S_T0, self.S_T1)
        A.e("s_lshl_b32 s%d, s%d, 15", self.S_OFF_ACT, self.S_T0)
        A.e("s_lshl_b32 s%d, s%d, 12", self.S_LACT, self.S_WAVE)
        A.e("v_lshrrev_b32 v%d, 4, v%d", T, L)
        A.e("v_bfe_u32 v%d, v%d, 2, 2", T + 2, L)
        A.e("v_and_b32 v%d, 3, v%d", T + 3, L)
        A.e("v_lshl_add_u32 v%d, v%d, 2, v%d", T + 4, T, T + 2)
        A.e("v_mul_u32_u24 v%d, 224, v%d", T + 5, T + 4)
        A.e("v_lshl_add_u32 v%d, v%d, 3, v%d", T + 5, T + 3, T + 5)
        A.e("v_add_u32 v%d, %d, v%d", T + 5, L_GATE, T + 5)
        A.e("s_lshl_b32 s%d, s7, 5", self.S_T0)
        A.e("v_add_u32 v%d, s%d, v%d", self.V_RG, self.S_T0, T + 5)
        A.e("s_cmp_eq_u32 s7, 0\ns_cselect_b32 s%d, 192, 0", self.S_T0)
        A.e("v_add_u32 v%d, s%d, v%d", self.V_RS, self.S_T0, T + 5)
        A.e("v_mul_u32_u24 v%d, 192, v%d", T + 5, T + 4)
        A.e("v_lshl_add_u32 v%d, v%d, 3, v%d", T + 5, T + 3, T + 5)
        A.e("v_add_u32 v%d, %d, v%d", T + 5, L_QKV, T + 5)
        A.e("v_and_b32 v%d, 1, v%d", T + 6, T)
        A.e("v_lshl_add_u32 v%d, v%d, 5, v%d", self.V_RQ0, T + 6, T + 5)
        A.e("v_xor_b32 v%d, 1, v%d", T + 6, T + 6)
        A.e("v_lshl_add_u32 v%d, v%d, 5, v%d", self.V_RQ1, T + 6, T + 5)
        A.e("s_lshl_b32 s%d, s%d, 13", self.S_T0, self.S_TH)
        A.e("v_add_u32 v%d, s%d, v%d", self.V_RX, self.S_T0, self.V_L16K[0])
        A.e("s_waitcnt lgkmcnt(0)")
        srd(A, self.SRD_ACT, 60, 61, 0x400000, WS_XN)

    def slot_setup(self, A, slot, typ, i):
        T = self.V_T + 8; L = self.V_LANE
        d = self.SRD_W[slot]
        if typ == 'qkv':
            srd(A, d, 42, 43, 1024 * 6144)
            A.e("s_mov_b32 s%d, %d", self.S_STR[slot], 32 * 6144)
            reg, magic, per, rs = L_QKV, 5462, 12, 6144
        else:
            p = 50 if typ == 'gate' else 52
            srd(A, d, p, p + 1, 1024 * 7168)
            A.e("s_mov_b32 s%d, %d", self.S_STR[slot], 32 * 7168)
            reg, magic, per, rs = (L_GATE if typ == 'gate' else L_UP), 4682, 14, 7168
        A.e("s_mov_b32 s%d, 0", self.S_OFF[slot])
        A.e("s_mov_b32 s%d, %d", self.S_LDST[slot], reg + 1024 * i)
        A.e("v_add_u32 v%d, %d, v%d", T, 64 * i, L)
        A.e("v_mul_u32_u24 v%d, %d, v%d", T + 1, magic, T)
        A.e("v_lshrrev_b32 v%d, 16, v%d", T + 1, T + 1)
        A.e("v_mul_u32_u24 v%d, %d, v%d", T + 2, per, T + 1)
        A.e("v_sub_u32 v%d, v%d, v%d", T + 2, T, T + 2)
        if typ == 'qkv':
            A.e("v_bfe_u32 v%d, v%d, 2, 1", T + 3, T + 1)
            A.e("v_lshlrev_b32 v%d, 1, v%d", T + 3, T + 3)
            A.e("v_xor_b32 v%d, v%d, v%d", T + 2, T + 2, T + 3)
            A.e("v_mul_u32_u24 v%d, 6144, v%d", T + 1, T + 1)
            A.e("v_lshrrev_b32 v%d, 2, v%d", T + 3, T + 2)
            A.e("v_lshlrev_b32 v%d, 11, v%d", T + 3, T + 3)
            A.e("v_and_b32 v%d, 3, v%d", T + 2, T + 2)
            A.e("v_lshl_add_u32 v%d, v%d, 4, v%d", T + 1, T + 2, T + 1)
            A.e("v_add_u32 v%d, v%d, v%d", T + 1, T + 3, T + 1)
            A.e("s_lshl_b32 s%d, s5, 6", self.S_T1)
        else:
            A.e("v_mul_u32_u24 v%d, %d, v%d", T + 1, rs, T + 1)
            A.e("v_lshl_add_u32 v%d, v%d, 4, v%d", T + 1, T + 2, T + 1)
            A.e("s_mul_i32 s%d, s5, 224", self.S_T1)
        A.e("v_add_u32 v%d, s%d, v%d", self.V_WOFF[slot], self.S_T1, T + 1)

    def dma_flat(self):
        G = []
        for k in range(4):
            G.append("  s_add_u32 m0, s%d, s%d" % (self.S_WB, self.S_LACT) if k == 0 else "  s_add_u32 m0, m0, 1024")
            G.append("  buffer_load_dwordx4 v%d, s[%d:%d], s%d offen lds" % (self.V_L16K[k], self.SRD_ACT, self.SRD_ACT + 3, self.S_OFF_ACT))
        G.append("  s_add_u32 s%d, s%d, 1024" % (self.S_OFF_ACT, self.S_OFF_ACT))
        for sl in range(5):
            d = self.SRD_W[sl]
            G += ["  s_add_u32 m0, s%d, s%d" % (self.S_WB, self.S_LDST[sl]),
                  "  buffer_load_dwordx4 v%d, s[%d:%d], s%d offen lds" % (self.V_WOFF[sl], d, d + 3, self.S_OFF[sl]),
                  "  s_add_u32 s%d, s%d, s%d" % (self.S_OFF[sl], self.S_OFF[sl], self.S_STR[sl])]
        G = [[x] for x in G]
        G.append(["  s_add_u32 s%d, s%d, %d" % (self.S_WB, self.S_WB, L_STAGE),
              "  s_cmp_eq_u32 s%d, %d" % (self.S_WB, L_STAGE * NSTG),
              "  s_cselect_b32 s%d, 0, s%d" % (self.S_WB, self.S_WB)])
        return G

    def reads(self, var, st):
        xs = ["  ds_read_b128 %s, v%d offset:%d" % (R(self.XF(st, t), 4), self.V_RX, t * 1024) for t in range(8)]
        ws = []
        for f, (kind, vb, imm) in enumerate(self.blocks(var)):
            for t in range(2):
                if kind in 'gu': off = 16 * t * 224 + imm + (L_UP - L_GATE if kind == 'u' else 0)
                else: off = 16 * t * 192 + imm
                ws.append("  ds_read_b64_tr_b16 %s, v%d offset:%d" % (R(self.WF(st, f) + 2 * t, 2), vb, off))
        return ws[0:2] + xs + ws[2:]

    def adv_read(self, var):
        regs = [self.V_RX, self.V_RG, self.V_RQ0, self.V_RQ1] + ([self.V_RS] if var == 0 else [])
        out = [["  s_add_u32 s%d, s%d, %d" % (self.S_RB, self.S_RB, L_STAGE),
               "  s_cmp_eq_u32 s%d, %d" % (self.S_RB, L_STAGE * NSTG),
               "  s_cselect_b32 s%d, 0, s%d" % (self.S_RB, self.S_RB),
               "  s_cselect_b32 s%d, s%d, s%d" % (self.S_RD, self.S_KN, self.S_KP)]]
        out += [["  v_add_u32 v%d, s%d, v%d" % (r_, self.S_RD, r_)] for r_ in regs]
        return out

    def mfmas(self, var, st):
        M = []
        bl = self.blocks(var)
        for f in range(10):
            ts = range(8) if (self.order != 'snake' or f % 2 == 0) else range(7, -1, -1)
            for t in ts:
                acc = R(self.ACC(f, t), 4); wf = R(self.WF(st, f), 4); xf = R(self.XF(st, t), 4)
                if bl[f][0] == 'V': M.append("  v_mfma_f32_16x16x32_bf16 %s, %s, %s, %s" % (acc, xf, wf, acc))
                else: M.append("  v_mfma_f32_16x16x32_bf16 %s, %s, %s, %s" % (acc, wf, xf, acc))
        return M

    def stage(self, var, st, extra):
        out = ["  s_waitcnt vmcnt(%d) lgkmcnt(0)" % (2 * self.ND), "  s_barrier"]
        rd = [[x] for x in self.reads(var, 1 - st)] + self.adv_read(var)
        dma = self.dma_flat()
        if self.dmapos == 0: fill = merge_flat(rd, dma)
        elif self.dmapos == 1: fill = rd + dma
        else: fill = dma + rd
        fill = flat(fill) + extra
        return out + weave(self.mfmas(var, st), fill, first=0, last=self.last)

    def variant(self, A, var):
        nm = self.name; nd = self.ND
        allw = [('gate', i) for i in range(7)] + [('up', i) for i in range(7)] + [('qkv', i) for i in range(6)]
        for th in (0, 1):
            lab = "L_%s_v%d_th%d" % (nm, var, th)
            if th == 0: A.e("s_cmp_ge_u32 s%d, 2\ns_cbranch_scc1 L_%s_v%d_th1", self.S_WAVE, nm, var)
            else: A.label(lab)
            w = var + 2 * th
            for sl in range(5):
                typ, i = allw[sl * 4 + w]
                self.slot_setup(A, sl, typ, i)
            if th == 0: A.e("s_branch L_%s_v%d_thx", nm, var)
        A.label("L_%s_v%d_thx" % (nm, var))
        srd(A, self.SRD_OUT, 44, 45, 65536)
        A.e("s_lshl_b32 s%d, s5, 11", self.S_T0)
        A.e("s_add_u32 s%d, s%d, %d", self.S_T0, self.S_T0, 1024 * var)
        A.e("s_mov_b32 m0, %d", L_WPHI + 1024 * var)
        A.e("s_nop 0")
        A.e("buffer_load_dwordx4 v%d, s[%d:%d], s%d offen lds", self.V_L16K[0], self.SRD_OUT, self.SRD_OUT + 3, self.S_T0)
        A.e("s_mov_b32 s%d, 0", self.S_WB)
        for st in range(NSTG): A.ext(flat(self.dma_flat()))
        for f in range(10):
            for t in range(8):
                b = self.ACC(f, t)
                for r_ in range(4):
                    A.e("v_accvgpr_write_b32 a%d, 0" % (b + r_ - 256) if b >= 256 else "v_mov_b32 v%d, 0" % (b + r_))
        A.e("s_mov_b32 s%d, 0", self.S_RB)
        A.e("s_mov_b32 s%d, %d\ns_mov_b32 s%d, 0x%x", self.S_KP, L_STAGE, self.S_KN, (-3 * L_STAGE) & 0xffffffff)
        A.e("s_waitcnt vmcnt(%d)", 3 * nd)
        A.e("s_barrier")
        A.ext(self.reads(var, 0))
        A.ext(flat(self.adv_read(var)))
        A.e("s_mov_b32 s%d, 16", self.S_CNT)
        if self.stamps: A.e("s_memtime s[86:87]\ns_memrealtime s[92:93]")
        lab = "L_%s_loop%d" % (nm, var)
        A.L.append(".p2align 6")
        A.label(lab)
        A.ext(self.stage(var, 0, []))
        A.ext(self.stage(var, 1, ["  s_sub_u32 s%d, s%d, 1" % (self.S_CNT, self.S_CNT), "  s_cmp_lg_u32 s%d, 0" % self.S_CNT]))
        A.e("s_cbranch_scc1 %s", lab)
        if self.stamps:
            A.e("s_memtime s[88:89]\ns_memrealtime s[94:95]\ns_waitcnt lgkmcnt(0)\ns_sub_u32 s88, s88, s86")
        A.e("s_waitcnt vmcnt(0) lgkmcnt(0)")
        A.e("s_nop 7")
        if self.dump: self.dump_acc(A, var)
        if self.epi:
            from g1epi import epilogue
            epilogue(self, A, var)
        if self.stamps: self.store_stamp(A)
        A.e("s_branch L_%s_done", nm)

    def dump_acc(self, A, var):
        srd(A, self.SRD_OUT, 60, 61, 0x8000000, WS_DBG)
        A.e("s_mul_i32 s%d, s2, 4", self.S_T0)
        A.e("s_add_u32 s%d, s%d, s%d", self.S_T0, self.S_T0, self.S_WAVE)
        A.e("s_mul_i32 s%d, s%d, %d", self.S_T0, self.S_T0, 80 * 1024)
        A.e("v_lshlrev_b32 v16, 2, v%d", self.V_LANE)
        for f in range(10):
            for t in range(8):
                b = self.ACC(f, t)
                for r_ in range(4):
                    A.e("buffer_store_dword %s, v16, s[%d:%d], s%d offen offset:%d", R(b + r_), self.SRD_OUT, self.SRD_OUT + 3, self.S_T0, r_ * 256)
                A.e("s_add_u32 s%d, s%d, 1024", self.S_T0, self.S_T0)
        A.e("s_waitcnt vmcnt(0)")

    def store_stamp(self, A):
        A.e("s_waitcnt vmcnt(0)\ns_memrealtime s[98:99]\ns_waitcnt lgkmcnt(0)")
        srd(A, self.SRD_OUT, 60, 61, 0x100000, WS_STAMP)
        A.e("s_mul_i32 s%d, s2, 4", self.S_T0)
        A.e("s_add_u32 s%d, s%d, s%d", self.S_T0, self.S_T0, self.S_WAVE)
        A.e("s_lshl_b32 s%d, s%d, 5", self.S_T0, self.S_T0)
        A.e("v_mov_b32 v20, s88\nv_mov_b32 v21, s92\nv_mov_b32 v22, s94\nv_mov_b32 v23, s96\nv_mov_b32 v17, 0\nv_mov_b32 v24, s98")
        A.e("v_cmp_eq_u32 vcc, 0, v%d", self.V_LANE)
        A.e("s_and_saveexec_b64 s[90:91], vcc")
        A.e("buffer_store_dwordx4 v[20:23], v17, s[%d:%d], s%d offen", self.SRD_OUT, self.SRD_OUT + 3, self.S_T0)
        A.e("buffer_store_dword v24, v17, s[%d:%d], s%d offen offset:16", self.SRD_OUT, self.SRD_OUT + 3, self.S_T0)
        A.e("s_mov_b64 exec, s[90:91]")

    def body(self):
        A = Asm()
        nm = self.name
        self.prologue(A)
        A.e("s_bitcmp1_b32 s%d, 0", self.S_WAVE)
        A.e("s_cbranch_scc1 L_%s_var1", nm)
        self.variant(A, 0)
        A.label("L_%s_var1" % nm)
        self.variant(A, 1)
        A.label("L_%s_done" % nm)
        A.e("s_endpgm")
        return fix_hazards(A.L)

def flat(gs): return [x for g in gs for x in g]

if __name__ == '__main__':
    import sys
    g = G1D(dump=True, stamps=True, epi=False)
    open(sys.argv[1], 'w').write(make_file([(g.name, g.body(), 512, 256, 256, 256, L_TOTAL_G1)]))
```

```python
from asmlib import *
from g1 import srd
from g1c import WS_ACT2, WS_PHIQ, WS_KVP, ACT2_KS, L_WPHI

L_XCH = L_WPHI + 2048
S_CP = 28; S_CN = 30
LOG2E_BITS = 0x3FB8AA3B
A_WPHI = 256 + 112
A_ID = 256 + 120
A_ONE = 256 + 126
A_KV = 256 + 132

def rd(A, dst, src):
    if src < 256: return src
    A.append("  v_accvgpr_read_b32 v%d, a%d" % (dst, src - 256))
    return dst

def gu_block(ga, ua, tmp):
    A = []
    if ga >= 256:
        for r in range(4): A.append("  v_accvgpr_read_b32 v%d, a%d" % (tmp + r, ga - 256 + r))
        g = tmp
    else: g = ga
    if ua >= 256:
        for r in range(4): A.append("  v_accvgpr_read_b32 v%d, a%d" % (tmp + 4 + r, ua - 256 + r))
        u = tmp + 4
    else: u = ua
    for r in range(4): A.append("  v_max_f32 v%d, 0, v%d" % (g + r, g + r))
    for r in (0, 2): A.append("  v_pk_mul_f32 %s, %s, %s" % (vr(g + r, 2), vr(g + r, 2), vr(u + r, 2)))
    return A, g

def zipstreams(streams):
    out = []; n = max(len(s_) for s_ in streams)
    for i in range(n):
        for s_ in streams:
            if i < len(s_): out.append(s_[i])
    return out

def softmax_stream(x0, x1, T, S):
    x = [x0, x0 + 1, x0 + 2, x0 + 3, x1, x1 + 1, x1 + 2, x1 + 3]
    A = []
    a = A.append
    a("  v_max3_f32 v%d, v%d, v%d, v%d" % (S, x[0], x[1], x[2]))
    a("  v_max3_f32 v%d, -v%d, -v%d, -v%d" % (S + 1, x[0], x[1], x[2]))
    a("  v_max3_f32 v%d, v%d, v%d, v%d" % (S, S, x[3], x[4]))
    a("  v_max3_f32 v%d, v%d, -v%d, -v%d" % (S + 1, S + 1, x[3], x[4]))
    a("  v_max3_f32 v%d, v%d, v%d, v%d" % (S, S, x[5], x[6]))
    a("  v_max3_f32 v%d, v%d, -v%d, -v%d" % (S + 1, S + 1, x[5], x[6]))
    a("  v_max_f32 v%d, v%d, v%d" % (S, S, x[7]))
    a("  v_max_f32_e64 v%d, v%d, -v%d" % (S + 1, S + 1, x[7]))
    a("  v_permlane16_swap_b32 v%d, v%d" % (S, S + 1))
    a("  v_max_f32 v%d, v%d, v%d" % (S, S, S + 1))
    a("  v_mov_b32 v%d, v%d" % (S + 1, S))
    a("  v_permlane32_swap_b32 v%d, v%d" % (S, S + 1))
    a("  v_max_f32 v%d, v%d, v%d" % (S, S, S + 1))
    a("  v_mul_f32 v%d, s%d, v%d" % (S, S_CP, S))
    a("  v_mov_b32 v%d, v%d" % (S + 1, S))
    a("  v_permlane16_swap_b32 v%d, v%d" % (S, S + 1))
    for i in (0, 2, 4, 6):
        a("  v_pk_fma_f32 %s, %s, s[%d:%d], %s op_sel_hi:[1,1,0] neg_lo:[0,0,1] neg_hi:[0,0,1]" %
          (vr(T + i, 2), vr(x[i], 2), S_CP, S_CP + 1, vr(S, 2)))
    for i in (0, 2, 4, 6):
        a("  v_pk_fma_f32 %s, %s, s[%d:%d], %s op_sel:[0,0,1] op_sel_hi:[1,1,1] neg_lo:[0,0,1] neg_hi:[0,0,1]" %
          (vr(x[i], 2), vr(x[i], 2), S_CN, S_CN + 1, vr(S, 2)))
    for i in range(8): a("  v_exp_f32 v%d, v%d" % (T + i, T + i))
    for i in range(8): a("  v_exp_f32 v%d, v%d" % (x[i], x[i]))
    a("  v_pk_add_f32 %s, %s, %s" % (vr(S, 2), vr(T, 2), vr(T + 2, 2)))
    a("  v_pk_add_f32 %s, %s, %s" % (vr(S + 2, 2), vr(x[0], 2), vr(x[2], 2)))
    a("  v_pk_add_f32 %s, %s, %s" % (vr(S, 2), vr(S, 2), vr(T + 4, 2)))
    a("  v_pk_add_f32 %s, %s, %s" % (vr(S + 2, 2), vr(S + 2, 2), vr(x[4], 2)))
    a("  v_pk_add_f32 %s, %s, %s" % (vr(S, 2), vr(S, 2), vr(T + 6, 2)))
    a("  v_pk_add_f32 %s, %s, %s" % (vr(S + 2, 2), vr(S + 2, 2), vr(x[6], 2)))
    a("  v_add_f32 v%d, v%d, v%d" % (S, S, S + 1))
    a("  v_add_f32 v%d, v%d, v%d" % (S + 1, S + 2, S + 3))
    a("  v_permlane16_swap_b32 v%d, v%d" % (S, S + 1))
    a("  v_add_f32 v%d, v%d, v%d" % (S, S, S + 1))
    a("  v_mov_b32 v%d, v%d" % (S + 1, S))
    a("  v_permlane32_swap_b32 v%d, v%d" % (S, S + 1))
    a("  v_add_f32 v%d, v%d, v%d" % (S, S, S + 1))
    a("  v_rcp_f32 v%d, v%d" % (S, S))
    a("  v_mov_b32 v%d, v%d" % (S + 1, S))
    a("  v_permlane16_swap_b32 v%d, v%d" % (S, S + 1))
    for i in (0, 2, 4, 6):
        a("  v_pk_mul_f32 %s, %s, %s op_sel_hi:[1,0]" % (vr(T + i, 2), vr(T + i, 2), vr(S, 2)))
    for i in (0, 2, 4, 6):
        a("  v_pk_mul_f32 %s, %s, %s op_sel:[0,1] op_sel_hi:[1,1]" % (vr(x[i], 2), vr(x[i], 2), vr(S, 2)))
    for i in range(4): a("  v_cvt_pk_bf16_f32 v%d, v%d, v%d" % (T + i, T + 2 * i, T + 2 * i + 1))
    for i in range(4): a("  v_cvt_pk_bf16_f32 v%d, v%d, v%d" % (x0 + i, x[2 * i], x[2 * i + 1]))
    return A

def pack4(dst, a_, b_):
    return ["  v_cvt_pk_bf16_f32 v%d, v%d, v%d" % (dst, a_, a_ + 1),
            "  v_cvt_pk_bf16_f32 v%d, v%d, v%d" % (dst + 1, a_ + 2, a_ + 3),
            "  v_cvt_pk_bf16_f32 v%d, v%d, v%d" % (dst + 2, b_, b_ + 1),
            "  v_cvt_pk_bf16_f32 v%d, v%d, v%d" % (dst + 3, b_ + 2, b_ + 3)]

def mfma(d, a_, b_, c):
    cs = "0" if c is None else R(c, 4)
    return "  v_mfma_f32_16x16x32_bf16 %s, %s, %s, %s" % (R(d, 4), R(a_, 4), R(b_, 4), cs)

def epilogue(g, A, var):
    nm = g.name
    L = g.V_LANE; L16 = g.V_L16K[0]
    SO = g.SRD_OUT
    S2 = 12
    ST0, ST1, ST2 = g.S_T0, g.S_T1, g.S_T2
    SB = 32
    SB2 = 33
    A.c("---- epilogue var %d" % var)
    A.e("s_mov_b32 s%d, 0x%x\ns_mov_b32 s%d, 0x%x", S_CP, LOG2E_BITS, S_CP + 1, LOG2E_BITS)
    A.e("s_mov_b32 s%d, 0x%x\ns_mov_b32 s%d, 0x%x", S_CN, LOG2E_BITS | 0x80000000, S_CN + 1, LOG2E_BITS | 0x80000000)
    srd(A, SO, 60, 61, 128 * ACT2_KS * 1024, WS_ACT2)
    A.e("v_lshrrev_b32 v3, 4, v%d", L)
    A.e("v_bfe_u32 v4, v%d, 2, 2", L)
    A.e("v_lshl_add_u32 v4, v3, 2, v4")
    A.e("v_and_b32 v5, 3, v%d", L)
    A.e("v_lshlrev_b32 v4, 6, v4")
    A.e("v_lshl_add_u32 v4, v5, 3, v4")
    A.e("v_add_u32 v4, %d, v4", L_WPHI)
    for fb in range(2):
        for t in range(2):
            A.e("ds_read_b64_tr_b16 %s, v4 offset:%d", R(A_WPHI + 4 * fb + 2 * t, 2), 16 * t * 64 + 32 * fb)
    A.e("s_lshl_b32 s%d, s4, 4\ns_lshl_b32 s%d, s%d, 3\ns_add_u32 s%d, s%d, s%d", ST0, ST1, g.S_TH, ST0, ST0, ST1)
    A.e("s_mul_i32 s%d, s%d, %d", SB2, ST0, ACT2_KS * 1024)
    A.e("s_lshr_b32 s%d, s5, 1\ns_mul_i32 s%d, s%d, 7", ST1, ST1, ST1)
    A.e("s_lshl_b32 s%d, s7, 2\ns_add_u32 s%d, s%d, s%d", ST2, ST2, ST2, ST1)
    def pair_stream(t, fa, tmp):
        s1, h1 = gu_block(g.ACC(fa, t), g.ACC(fa + 1, t), tmp)
        s2, h2 = gu_block(g.ACC(fa + 2, t), g.ACC(fa + 3, t), tmp + 8)
        return s1 + s2 + pack4(h1, h1, h2), h1
    def emit_pair(fa, ks_add):
        A.e("s_add_u32 s%d, s%d, %d\ns_lshl_b32 s%d, s%d, 10\ns_add_u32 s%d, s%d, s%d", SB, ST2, ks_add, SB, SB, SB, SB, SB2)
        for t0 in range(0, 8, 2):
            st = [pair_stream(t0 + k, fa, 16 + 16 * k) for k in range(2)]
            A.ext(zipstreams([st[0][0], st[1][0]]))
            for k in range(2):
                A.e("buffer_store_dwordx4 %s, v%d, s[%d:%d], s%d offen", vr(st[k][1], 4), L16, SO, SO + 3, SB)
                A.e("s_add_u32 s%d, s%d, %d", SB, SB, ACT2_KS * 1024)
    if var == 1:
        emit_pair(2, 1)
        emit_pair(6, 2)
    else:
        emit_pair(4, 0)
        A.e("s_add_u32 s%d, s%d, 3\ns_lshl_b32 s%d, s%d, 10\ns_add_u32 s%d, s%d, s%d", SB, ST1, SB, SB, SB, SB, SB2)
        A.e("s_lshl_b32 s%d, s7, 3\ns_add_u32 s%d, s%d, s%d", ST1, SB, SB, ST1)
        for t0 in range(0, 8, 4):
            sts = []
            for k in range(4):
                s1, h = gu_block(g.ACC(8, t0 + k), g.ACC(9, t0 + k), 16 + 8 * k)
                s1 += ["  v_cvt_pk_bf16_f32 v%d, v%d, v%d" % (h, h, h + 1), "  v_cvt_pk_bf16_f32 v%d, v%d, v%d" % (h + 1, h + 2, h + 3)]
                sts.append((s1, h))
            A.ext(zipstreams([s_[0] for s_ in sts]))
            for k in range(4):
                A.e("buffer_store_dwordx2 %s, v%d, s[%d:%d], s%d offen", vr(sts[k][1], 2), L16, SO, SO + 3, SB)
                A.e("s_add_u32 s%d, s%d, %d", SB, SB, ACT2_KS * 1024)
    T = lambda t: 176 + 8 * t
    S = lambda t: 16 + 4 * t
    X0 = lambda t: g.ACC(0, t); X1 = lambda t: g.ACC(1, t)
    A.e("s_waitcnt lgkmcnt(0)")
    for t in range(8): A.ext(pack4(X0(t), X0(t), X1(t)))
    for t in range(8):
        A.L.append(mfma(X1(t), A_WPHI, X0(t), None))
        A.L.append(mfma(X0(t), A_WPHI + 4, X0(t), None))
    if var == 0:
        A.e("v_lshrrev_b32 v3, 4, v%d\nv_and_b32 v4, 15, v%d\nv_lshlrev_b32 v3, 2, v3\nv_sub_u32 v3, v4, v3", L, L)
        A.e("v_mov_b32 v5, 0x3f80\nv_mov_b32 v6, 0x3f800000\nv_mov_b32 v7, 0")
        A.e("v_cmp_eq_u32 vcc, 0, v3\nv_cndmask_b32 v8, v7, v5, vcc")
        A.e("v_cmp_eq_u32 vcc, 1, v3\nv_cndmask_b32 v8, v8, v6, vcc")
        A.e("v_cmp_eq_u32 vcc, 2, v3\nv_cndmask_b32 v9, v7, v5, vcc")
        A.e("v_cmp_eq_u32 vcc, 3, v3\nv_cndmask_b32 v9, v9, v6, vcc")
        i0 = A_ID - 256
        A.e("v_accvgpr_write_b32 a%d, v7\nv_accvgpr_write_b32 a%d, v7\nv_accvgpr_write_b32 a%d, v8\nv_accvgpr_write_b32 a%d, v9\nv_accvgpr_write_b32 a%d, v7\nv_accvgpr_write_b32 a%d, v7",
            i0, i0 + 1, i0 + 2, i0 + 3, i0 + 4, i0 + 5)
        A.e("v_mov_b32 v5, 0x3f803f80")
        for r in range(4): A.e("v_accvgpr_write_b32 a%d, v5", A_ONE - 256 + r)
    A.ext(zipstreams([softmax_stream(X1(t), X0(t), T(t), S(t)) for t in range(8)]))
    if var == 1:
        srd(A, S2, 60, 61, 0x800000, WS_PHIQ)
        A.e("s_lshl_b32 s%d, s5, 7\ns_add_u32 s%d, s%d, s%d\ns_lshl_b32 s%d, s%d, 11", SB, SB, SB, ST0, SB, SB)
        for t in range(8):
            A.e("buffer_store_dwordx4 %s, v%d, s[%d:%d], s%d offen", vr(T(t), 4), L16, S2, S2 + 3, SB)
            A.e("buffer_store_dwordx4 %s, v%d, s[%d:%d], s%d offen offset:1024", vr(X1(t), 4), L16, S2, S2 + 3, SB)
            A.e("s_add_u32 s%d, s%d, 2048", SB, SB)
        A.e("s_barrier")
        return
    I1 = A_ID; I0 = A_ID + 2
    for t in range(8):
        A.L.append(mfma(X0(t), T(t), I0, None))
        A.L.append(mfma(T(t), T(t), I1, None))
        A.L.append(mfma(T(t) + 4, X1(t), I0, None))
        A.L.append(mfma(X1(t), X1(t), I1, None))
    V0 = lambda t: g.ACC(2, t); V1 = lambda t: g.ACC(3, t)
    pk = []
    for p in range(4):
        t0, t1 = 2 * p, 2 * p + 1
        pk += pack4(V0(t0), V0(t0), V0(t1)) + pack4(V1(t0), V1(t0), V1(t1))
    A.ext(pk)
    for p in range(4):
        t0, t1 = 2 * p, 2 * p + 1
        A.ext(pack4(X0(t0), X0(t0), X0(t1)) + pack4(T(t0), T(t0), T(t1)) + pack4(T(t0) + 4, T(t0) + 4, T(t1) + 4) + pack4(X1(t0), X1(t0), X1(t1)))
    for p in range(4):
        t0 = 2 * p
        fr = [X0(t0), T(t0), T(t0) + 4, X1(t0)]
        for sf in range(4):
            for db in range(2):
                d = A_KV + 4 * (sf * 2 + db)
                A.L.append(mfma(d, fr[sf], V0(t0) if db == 0 else V1(t0), None if p == 0 else d))
            d = A_KV + 4 * (8 + sf)
            A.L.append(mfma(d, fr[sf], A_ONE, None if p == 0 else d))
    A.e("s_mul_i32 s%d, s%d, 6144", ST1, g.S_TH)
    A.e("v_add_u32 v3, %d, v%d", L_XCH, L16)
    A.e("v_add_u32 v4, s%d, v3", ST1)
    A.e("s_xor_b32 s%d, s%d, 6144", ST1, ST1)
    A.e("v_add_u32 v5, s%d, v3", ST1)
    A.e("s_cmp_eq_u32 s%d, 0\ns_cbranch_scc0 L_%s_xch1", g.S_TH, nm)
    for th in range(2):
        if th == 1: A.label("L_%s_xch1" % nm)
        keep = range(6 * th, 6 * th + 6); send = range(6 * (1 - th), 6 * (1 - th) + 6)
        for k, b in enumerate(send):
            A.e("ds_write_b128 v4, %s offset:%d", R(A_KV + 4 * b, 4), k * 1024)
        for k, b in enumerate(keep):
            for r in range(4): A.e("v_accvgpr_read_b32 v%d, a%d", 48 + 4 * k + r, A_KV - 256 + 4 * b + r)
        A.e("s_waitcnt lgkmcnt(0)\ns_barrier")
        for k in range(6): A.e("ds_read_b128 %s, v5 offset:%d", vr(80 + 4 * k, 4), k * 1024)
        if th == 0:
            srd(A, S2, 60, 61, 32 * 8 * 12 * 1024, WS_KVP)
        else:
            srd(A, S2, 60, 61, 32 * 8 * 12 * 1024, WS_KVP)
        A.e("s_lshl_b32 s%d, s5, 3\ns_add_u32 s%d, s%d, s4\ns_mul_i32 s%d, s%d, %d", SB, SB, SB, SB, SB, 12 * 1024)
        A.e("s_add_u32 s%d, s%d, %d", SB, SB, 6 * th * 1024)
        A.e("s_waitcnt lgkmcnt(0)")
        for k in range(6):
            for r in (0, 2):
                A.e("v_pk_add_f32 %s, %s, %s", vr(48 + 4 * k + r, 2), vr(48 + 4 * k + r, 2), vr(80 + 4 * k + r, 2))
        for k in range(6):
            if k < 4: A.e("buffer_store_dwordx4 %s, v%d, s[%d:%d], s%d offen offset:%d", vr(48 + 4 * k, 4), L16, S2, S2 + 3, SB, k * 1024)
            else:
                if k == 4: A.e("s_add_u32 s%d, s%d, 4096", SB, SB)
                A.e("buffer_store_dwordx4 %s, v%d, s[%d:%d], s%d offen offset:%d", vr(48 + 4 * k, 4), L16, S2, S2 + 3, SB, (k - 4) * 1024)
        if th == 0: A.e("s_branch L_%s_xchd", nm)
    A.label("L_%s_xchd" % nm)
```

```python
from asmlib import *
from g1 import srd
from g1c import WS_ACT2, WS_PART, WS_STAMP, ACT2_KS, merge_flat
from kln import WS_FLAG

class G2:
    def __init__(self, name='g2_kernel', stamps=False, XD=6, WL=3):
        self.name = name; self.stamps = stamps; self.XD = XD; self.WL = WL
        self.NB = WL + 1
    STG = 16384
    S_WAVE = 3; S_MT = 4; S_NT = 5; S_SP = 6
    SRD_X = 8; SRD_W = 12; SRD_O = 16; SRD_P = 20; SRD_F = 24
    S_XOFF = 28; S_WOFF = 29; S_WB = 30; S_RB = 31; S_RD = 32; S_CNT = 33; S_WST = 34; S_SW = 35; S_KP = 36; S_KN = 37
    S_T0 = 64; S_T1 = 65; S_T2 = 66; S_WL = 67
    V_LANE = 1; V_L16 = 2; V_XO = [3, 4, 5, 6]; V_WO = 7; V_RA = [8, 9, 10, 11, 12, 13, 14, 15]
    def ACC(self, b, t): return 128 + (b * 4 + t) * 4
    def WF(self, st, b): return 64 + st * 32 + 4 * b
    def XF(self, slot, t): return 256 + slot * 16 + 4 * t

    def x_loads(self, slot):
        L = ["  buffer_load_dwordx4 %s, v%d, s[%d:%d], s%d offen" % (R(self.XF(slot, t), 4), self.V_XO[t], self.SRD_X, self.SRD_X + 3, self.S_XOFF) for t in range(4)]
        return [[x] for x in L] + [["  s_add_u32 s%d, s%d, 1024" % (self.S_XOFF, self.S_XOFF)]]
    def w_dma(self, half):
        G = []
        if half == 0:
            G.append(["  s_cmp_eq_u32 s%d, s%d" % (self.S_WST, self.S_SW),
                      "  s_cselect_b32 s%d, s46, s%d" % (self.SRD_W, self.SRD_W),
                      "  s_cselect_b32 s%d, s%d, s%d" % (self.SRD_W + 1, self.S_T2, self.SRD_W + 1),
                      "  s_cselect_b32 s%d, s%d, s%d" % (self.SRD_W + 2, self.S_WL, self.SRD_W + 2),
                      "  s_cselect_b32 s%d, s%d, s%d" % (self.S_WOFF, self.S_T1, self.S_WOFF)])
            G.append(["  s_add_u32 s%d, s%d, 1" % (self.S_WST, self.S_WST)])
        for k in range(2):
            first = (half == 0 and k == 0)
            G.append(["  s_add_u32 m0, s%d, s%d" % (self.S_WB, self.S_T0)] if first else ["  s_add_u32 m0, m0, 4096"])
            G.append(["  buffer_load_dwordx4 v%d, s[%d:%d], s%d offen lds" % (self.V_WO, self.SRD_W, self.SRD_W + 3, self.S_WOFF)])
            G.append(["  s_add_u32 s%d, s%d, %d" % (self.S_WOFF, self.S_WOFF, 16 * 2048)])
        if half == 1:
            G.append(["  s_add_u32 s%d, s%d, %d" % (self.S_WB, self.S_WB, self.STG),
                      "  s_cmp_eq_u32 s%d, %d" % (self.S_WB, self.STG * self.NB),
                      "  s_cselect_b32 s%d, 0, s%d" % (self.S_WB, self.S_WB)])
        return G
    def w_reads(self, st, u):
        out = []
        for b in range(8):
            for t in range(2):
                out.append(["  ds_read_b64_tr_b16 %s, v%d offset:%d" % (vr(self.WF(st, b) + 2 * t, 2), self.V_RA[b], (32 * u + 16 * t) * 256)])
        return out
    def adv_read(self):
        out = [["  s_add_u32 s%d, s%d, %d" % (self.S_RB, self.S_RB, self.STG),
                "  s_cmp_eq_u32 s%d, %d" % (self.S_RB, self.STG * self.NB),
                "  s_cselect_b32 s%d, 0, s%d" % (self.S_RB, self.S_RB),
                "  s_cselect_b32 s%d, s%d, s%d" % (self.S_RD, self.S_KN, self.S_KP)]]
        out += [["  v_add_u32 v%d, s%d, v%d" % (r_, self.S_RD, r_)] for r_ in self.V_RA]
        return out
    def mfmas(self, st, slot):
        M = []
        for b in range(8):
            for t in (range(4) if b % 2 == 0 else range(3, -1, -1)):
                acc = vr(self.ACC(b, t), 4)
                M.append("  v_mfma_f32_16x16x32_bf16 %s, %s, %s, %s" % (acc, vr(self.WF(st, b), 4), R(self.XF(slot, t), 4), acc))
        return M

    def step(self, i, extra):
        XD, WL = self.XD, self.WL
        st = i & 1
        out = []
        nX = 26 if False else (XD - 2) * 6 + 2
        if st == 1:
            nW = (2 * WL - 3) * 6
            out.append("  s_waitcnt vmcnt(%d) lgkmcnt(0)" % min(nX, nW))
            out.append("  s_barrier")
            rd = self.adv_read() + self.w_reads(0, 0)
        else:
            out.append("  s_waitcnt vmcnt(%d) lgkmcnt(0)" % nX)
            rd = self.w_reads(1, 1)
        vm = self.x_loads((i + XD - 1) % XD) + self.w_dma(st)
        if st == 1:
            adv = rd[:9]; rest = rd[9:]
            fill = adv + merge_flat(rest, vm)
        else:
            fill = merge_flat(rd, vm)
        fill = [x for g_ in fill for x in g_] + extra
        return out + weave(self.mfmas(st, i % XD), fill, first=0, last=31)

    def body(self):
        A = Asm(); nm = self.name
        XD, WL = self.XD, self.WL
        A.e("s_cmp_ge_u32 s2, 256\ns_cbranch_scc1 L_%s_done" % nm)
        if self.stamps: A.e("s_memrealtime s[96:97]")
        A.e("s_load_dwordx16 s[40:55], s[0:1], 0")
        A.e("s_load_dwordx4 s[56:59], s[0:1], 64")
        A.e("s_load_dwordx2 s[60:61], s[0:1], 80")
        A.e("v_lshrrev_b32 v16, 6, v0\nv_and_b32 v1, 63, v0")
        A.e("v_readfirstlane_b32 s3, v16")
        A.e("s_and_b32 s6, s2, 3")
        A.e("s_bfe_u32 s4, s2, 0x10002\ns_lshl_b32 s4, s4, 2\ns_bfe_u32 s7, s2, 0x20003\ns_add_u32 s4, s4, s7")
        A.e("s_lshr_b32 s5, s2, 5")
        A.e("v_lshlrev_b32 v2, 4, v1")
        for t in range(4):
            if t == 0: A.e("v_mov_b32 v%d, v2", self.V_XO[0])
            else: A.e("v_add_u32 v%d, 0x%x, v2", self.V_XO[t], t * ACT2_KS * 1024)
        A.e("v_lshrrev_b32 v16, 4, v1")
        A.e("s_and_b32 s7, s3, 1\ns_lshl_b32 s7, s7, 2")
        A.e("v_add_u32 v17, s7, v16")
        A.e("v_bfe_u32 v18, v1, 1, 3")
        A.e("v_xor_b32 v18, v18, v17")
        A.e("v_and_b32 v19, 1, v1")
        A.e("v_lshl_add_u32 v18, v18, 1, v19")
        A.e("v_lshlrev_b32 v18, 4, v18")
        A.e("v_lshl_add_u32 v18, v16, 11, v18")
        A.e("s_lshl_b32 s7, s5, 8")
        A.e("v_add_u32 v%d, s7, v18", self.V_WO)
        A.e("v_lshrrev_b32 v16, 4, v1\nv_bfe_u32 v17, v1, 2, 2\nv_lshl_add_u32 v18, v16, 2, v17")
        A.e("v_and_b32 v19, 7, v18")
        A.e("v_lshlrev_b32 v18, 8, v18\nv_and_b32 v20, 3, v1\nv_lshl_add_u32 v18, v20, 3, v18")
        for b in range(8):
            A.e("v_xor_b32 v20, %d, v19\nv_lshl_add_u32 v%d, v20, 5, v18", b, self.V_RA[b])
        A.e("s_waitcnt lgkmcnt(0)")
        srd(A, self.SRD_X, 60, 61, 128 * ACT2_KS * 1024, WS_ACT2)
        srd(A, self.SRD_W, 54, 55, 3584 * 2048)
        A.e("s_lshl_b32 s7, s4, 4\ns_lshl_b32 s%d, s3, 2\ns_add_u32 s7, s7, s%d\ns_mul_i32 s7, s7, %d", self.S_T0, self.S_T0, ACT2_KS)
        A.e("s_mul_i32 s%d, s6, 36\ns_add_u32 s7, s7, s%d\ns_lshl_b32 s%d, s7, 10", self.S_T0, self.S_T0, self.S_XOFF)
        A.e("s_mul_i32 s7, s6, %d\ns_lshl_b32 s%d, s3, 13\ns_add_u32 s%d, s7, s%d", 36 * 32 * 2048, self.S_T1, self.S_WOFF, self.S_T1)
        A.e("s_cmp_eq_u32 s6, 3\ns_cselect_b32 s%d, 2, 99", self.S_SW)
        A.e("s_and_b32 s%d, s47, 0xffff\ns_mov_b32 s%d, %d", self.S_T2, self.S_WL, 1024 * 2048)
        A.e("s_lshl_b32 s%d, s3, 10", self.S_T0)
        A.e("s_mov_b32 s%d, 0\ns_mov_b32 s%d, 0\ns_mov_b32 s%d, 0", self.S_WB, self.S_RB, self.S_WST)
        A.e("s_mov_b32 s%d, %d\ns_mov_b32 s%d, 0x%x", self.S_KP, self.STG, self.S_KN, (-(self.NB - 1) * self.STG) & 0xffffffff)
        nvm = 0
        for i in range(-2 * WL, 0):
            xi = i + XD - 1
            if xi >= 0:
                for g_ in self.x_loads(xi % XD): A.ext(g_)
            for g_ in self.w_dma(i & 1): A.ext(g_)
        if XD - 1 > 2 * WL: raise AssertionError("XD too large for prologue")
        for k in range(128, 256): A.e("v_mov_b32 v%d, 0", k)
        after = 0
        for i in range(-2 * WL + 2, 0): after += 2 + (4 if i + XD - 1 >= 0 else 0)
        A.e("s_waitcnt vmcnt(%d)\ns_barrier", after)
        for g_ in self.w_reads(0, 0): A.ext(g_)
        nit = 36 // XD
        A.e("s_mov_b32 s%d, %d", self.S_CNT, nit)
        if self.stamps: A.e("s_memtime s[86:87]\ns_memrealtime s[92:93]")
        A.L.append(".p2align 6")
        A.label("L_%s_loop" % nm)
        for i in range(XD):
            extra = ["  s_sub_u32 s%d, s%d, 1" % (self.S_CNT, self.S_CNT), "  s_cmp_lg_u32 s%d, 0" % self.S_CNT] if i == XD - 1 else []
            A.ext(self.step(i, extra))
        A.e("s_cbranch_scc1 L_%s_loop", nm)
        if self.stamps: A.e("s_memtime s[88:89]\ns_memrealtime s[94:95]\ns_waitcnt lgkmcnt(0)\ns_sub_u32 s88, s88, s86")
        A.e("s_waitcnt vmcnt(0) lgkmcnt(0)\ns_nop 7")
        self.epilogue(A)
        if self.stamps: self.store_stamp(A)
        A.label("L_%s_done" % nm)
        A.e("s_endpgm")
        return fix_hazards(A.L)

    def epilogue(self, A):
        nm = self.name
        P = self.SRD_P; F = self.SRD_F
        srd(A, P, 60, 61, 64 * 16 * 4 * 8 * 1024, WS_PART)
        srd(A, F, 60, 61, 64 * 128, WS_FLAG)
        A.e("s_lshl_b32 s%d, s4, 3\ns_add_u32 s%d, s%d, s5", self.S_T0, self.S_T0, self.S_T0)
        A.e("s_lshl_b32 s%d, s%d, 4\ns_add_u32 s%d, s%d, s6\ns_lshl_b32 s%d, s%d, 2\ns_add_u32 s%d, s%d, s3\ns_lshl_b32 s%d, s%d, 13",
            self.S_T1, self.S_T0, self.S_T1, self.S_T1, self.S_T1, self.S_T1, self.S_T1, self.S_T1, self.S_T1, self.S_T1)
        for o in range(4):
            A.e("s_cmp_eq_u32 s6, %d\ns_cbranch_scc1 L_%s_skip%d", o, nm, o)
            for k in range(8):
                b, t = 2 * o + k // 4, k % 4
                if k == 4: A.e("s_add_u32 s%d, s%d, 4096", self.S_T2, self.S_T1)
                A.e("buffer_store_dwordx4 %s, v2, s[%d:%d], s%d offen offset:%d sc1", vr(self.ACC(b, t), 4), P, P + 3, self.S_T1 if k < 4 else self.S_T2, (k % 4) * 1024)
            A.label("L_%s_skip%d" % (nm, o))
            A.e("s_add_u32 s%d, s%d, %d", self.S_T1, self.S_T1, 4 * 4 * 8192)
        for o in range(4):
            A.e("s_cmp_eq_u32 s6, %d\ns_cbranch_scc0 L_%s_own%d", o, nm, o)
            for k in range(8):
                b, t = 2 * o + k // 4, k % 4
                for r_ in range(4): A.e("v_mov_b32 v%d, v%d", 16 + 4 * k + r_, self.ACC(b, t) + r_)
            A.label("L_%s_own%d" % (nm, o))
        srd(A, self.SRD_X, 40, 41, 2048 * 2048)
        srd(A, self.SRD_O, 56, 57, 2048 * 2048)
        A.e("v_and_b32 v48, 15, v1\nv_lshlrev_b32 v48, 11, v48")
        A.e("v_bfe_u32 v49, v1, 4, 1\nv_lshl_add_u32 v48, v49, 5, v48")
        A.e("v_lshrrev_b32 v49, 5, v1\nv_lshl_add_u32 v48, v49, 4, v48")
        A.e("s_lshl_b32 s%d, s4, 8\ns_lshl_b32 s%d, s3, 6\ns_add_u32 s%d, s%d, s%d\ns_lshl_b32 s%d, s%d, 11",
            self.S_T1, self.S_T2, self.S_T1, self.S_T1, self.S_T2, self.S_T1, self.S_T1)
        A.e("s_lshl_b32 s%d, s5, 8\ns_add_u32 s%d, s%d, s%d\ns_lshl_b32 s%d, s6, 6\ns_add_u32 s%d, s%d, s%d",
            self.S_T2, self.S_T1, self.S_T1, self.S_T2, self.S_T2, self.S_T1, self.S_T1, self.S_T2)
        A.e("s_mov_b32 s%d, s%d", self.S_XOFF, self.S_T1)
        for t in range(4):
            A.e("buffer_load_dwordx4 v[%d:%d], v48, s[%d:%d], s%d offen", 112 + 4 * t, 115 + 4 * t, self.SRD_X, self.SRD_X + 3, self.S_T1)
            A.e("s_add_u32 s%d, s%d, %d", self.S_T1, self.S_T1, 16 * 2048)
        A.e("s_waitcnt vmcnt(4)")
        A.e("s_barrier")
        A.e("s_cmp_eq_u32 s3, 0\ns_cbranch_scc0 L_%s_nopub", nm)
        A.e("s_lshl_b32 s%d, s%d, 7", self.S_T2, self.S_T0)
        A.e("v_mov_b32 v50, 1\nv_mov_b32 v51, 0")
        A.e("s_mov_b64 s[68:69], exec\ns_mov_b64 exec, 1")
        A.e("buffer_atomic_add v50, v51, s[%d:%d], s%d offen sc1", F, F + 3, self.S_T2)
        A.label("L_%s_poll" % nm)
        A.e("buffer_load_dword v52, v51, s[%d:%d], s%d offen sc1", F, F + 3, self.S_T2)
        A.e("s_waitcnt vmcnt(0)")
        A.e("v_readfirstlane_b32 s70, v52")
        A.e("s_cmp_ge_u32 s70, 4\ns_cbranch_scc1 L_%s_polled", nm)
        A.e("s_sleep 1\ns_branch L_%s_poll", nm)
        A.label("L_%s_polled" % nm)
        A.e("s_mov_b64 exec, s[68:69]")
        A.label("L_%s_nopub" % nm)
        A.e("s_barrier")
        A.e("s_lshl_b32 s%d, s%d, 2\ns_add_u32 s%d, s%d, s6\ns_lshl_b32 s%d, s%d, 4\ns_add_u32 s%d, s%d, s3\ns_lshl_b32 s%d, s%d, 13",
            self.S_T1, self.S_T0, self.S_T1, self.S_T1, self.S_T1, self.S_T1, self.S_T1, self.S_T1, self.S_T1, self.S_T1)
        for k3 in range(3):
            A.e("s_add_u32 s%d, s6, %d\ns_and_b32 s%d, s%d, 3\ns_lshl_b32 s%d, s%d, 15\ns_add_u32 s%d, s%d, s%d",
                self.S_T2, k3 + 1, self.S_T2, self.S_T2, self.S_T2, self.S_T2, self.S_T2, self.S_T2, self.S_T1)
            for k in range(8):
                if k == 4: A.e("s_add_u32 s%d, s%d, 4096", self.S_T2, self.S_T2)
                A.e("buffer_load_dwordx4 v[%d:%d], v2, s[%d:%d], s%d offen offset:%d sc1", 128 + 32 * k3 + 4 * k, 131 + 32 * k3 + 4 * k, P, P + 3, self.S_T2, (k % 4) * 1024)
        for k3 in range(3):
            A.e("s_waitcnt vmcnt(%d)", 16 - 8 * k3)
            for k in range(8):
                for r_ in (0, 2):
                    A.e("v_pk_add_f32 v[%d:%d], v[%d:%d], v[%d:%d]", 16 + 4 * k + r_, 17 + 4 * k + r_, 16 + 4 * k + r_, 17 + 4 * k + r_,
                        128 + 32 * k3 + 4 * k + r_, 129 + 32 * k3 + 4 * k + r_)
        for t in range(4):
            b0 = 16 + 4 * t; b1 = 32 + 4 * t
            for r_ in range(4): A.e("v_permlane16_swap_b32 v%d, v%d", b0 + r_, b1 + r_)
        for t in range(4):
            b0 = 16 + 4 * t; b1 = 32 + 4 * t; xr = 112 + 4 * t
            for d in range(4):
                src = b0 + 2 * d if d < 2 else b1 + 2 * (d - 2)
                A.e("v_lshlrev_b32 v64, 16, v%d\nv_and_b32 v65, 0xffff0000, v%d", xr + d, xr + d)
                A.e("v_pk_add_f32 v[%d:%d], v[%d:%d], v[64:65]", src, src + 1, src, src + 1)
                A.e("v_cvt_pk_bf16_f32 v%d, v%d, v%d", 68 + 4 * t + d, src, src + 1)
            A.e("buffer_store_dwordx4 v[%d:%d], v48, s[%d:%d], s%d offen", 68 + 4 * t, 71 + 4 * t, self.SRD_O, self.SRD_O + 3, self.S_XOFF)
            A.e("s_add_u32 s%d, s%d, %d", self.S_XOFF, self.S_XOFF, 16 * 2048)

    def store_stamp(self, A):
        A.e("s_waitcnt vmcnt(0)\ns_memrealtime s[98:99]\ns_waitcnt lgkmcnt(0)")
        srd(A, 16, 60, 61, 0x100000, WS_STAMP + 0x10000)
        A.e("s_mul_i32 s64, s2, 4\ns_add_u32 s64, s64, s3\ns_lshl_b32 s64, s64, 5")
        A.e("v_mov_b32 v20, s88\nv_mov_b32 v21, s92\nv_mov_b32 v22, s94\nv_mov_b32 v23, s96\nv_mov_b32 v17, 0\nv_mov_b32 v24, s98")
        A.e("v_cmp_eq_u32 vcc, 0, v1\ns_and_saveexec_b64 s[90:91], vcc")
        A.e("buffer_store_dwordx4 v[20:23], v17, s[16:19], s64 offen\nbuffer_store_dword v24, v17, s[16:19], s64 offen offset:16")
        A.e("s_mov_b64 exec, s[90:91]")
```

```python
from asmlib import *
from g1 import srd
from g1c import WS_XN
WS_FLAG = 0x3000000

def ln_body(name='ln_kernel'):
    A = Asm()
    A.e("s_cmp_ge_u32 s2, 128\ns_cbranch_scc1 L_%s_done" % name)
    A.e("s_load_dwordx2 s[4:5], s[0:1], 0")
    A.e("s_load_dwordx2 s[6:7], s[0:1], 80")
    A.e("v_lshrrev_b32 v2, 6, v0")
    A.e("v_and_b32 v1, 63, v0")
    A.e("v_readfirstlane_b32 s3, v2")
    A.e("v_and_b32 v3, 15, v1")
    A.e("v_lshrrev_b32 v4, 4, v1")
    A.e("v_lshlrev_b32 v5, 11, v3")
    A.e("v_lshrrev_b32 v6, 1, v4\nv_lshl_add_u32 v5, v6, 6, v5")
    A.e("v_and_b32 v7, 1, v4\nv_lshl_add_u32 v5, v7, 4, v5")
    A.e("s_lshl_b32 s8, s2, 15\ns_lshl_b32 s9, s3, 9\ns_add_u32 s8, s8, s9")
    A.e("s_waitcnt lgkmcnt(0)")
    srd(A, 12, 4, 5, 2048 * 2048)
    srd(A, 16, 6, 7, 0x400000, WS_XN)
    for i in range(4):
        A.e("buffer_load_dwordx4 v[%d:%d], v5, s[12:15], s8 offen offset:%d", 16 + 8 * i, 19 + 8 * i, i * 128)
        A.e("buffer_load_dwordx4 v[%d:%d], v5, s[12:15], s8 offen offset:%d", 20 + 8 * i, 23 + 8 * i, i * 128 + 32)
    srd(A, 20, 6, 7, 64 * 128, WS_FLAG)
    A.e("s_cmp_lt_u32 s2, 64\ns_cselect_b32 s10, 1, 0\ns_cmp_eq_u32 s3, 0\ns_cselect_b32 s10, s10, 0\ns_cmp_eq_u32 s10, 0\ns_cbranch_scc1 L_%s_nz" % name)
    A.e("v_lshlrev_b32 v8, 2, v1\nv_mov_b32 v9, 0\ns_lshl_b32 s10, s2, 7")
    A.e("v_cmp_gt_u32 vcc, 32, v1\ns_and_saveexec_b64 s[24:25], vcc")
    A.e("buffer_store_dword v9, v8, s[20:23], s10 offen")
    A.e("s_mov_b64 exec, s[24:25]")
    A.label("L_%s_nz" % name)
    A.e("v_lshlrev_b32 v10, 10, v6")
    A.e("v_lshl_add_u32 v10, v7, 9, v10")
    A.e("v_lshl_add_u32 v10, v3, 4, v10")
    A.e("s_lshl_b32 s11, s2, 15\ns_lshl_b32 s9, s3, 13\ns_add_u32 s11, s11, s9")
    A.e("s_waitcnt vmcnt(0)" if True else "")
    for d in range(32):
        A.e("v_lshlrev_b32 v%d, 16, v%d", 64 + 2 * d, 16 + d)
        A.e("v_and_b32 v%d, 0xffff0000, v%d", 65 + 2 * d, 16 + d)
    A.e("v_pk_add_f32 v[48:49], v[64:65], v[66:67]")
    for d in range(2, 32): A.e("v_pk_add_f32 v[48:49], v[48:49], v[%d:%d]", 64 + 2 * d, 65 + 2 * d)
    A.e("v_add_f32 v48, v48, v49")
    def xreduce(reg, slot):
        A.e("v_mov_b32 v49, v%d\nv_permlane16_swap_b32 v%d, v49\nv_add_f32 v%d, v%d, v49" % (reg, reg, reg, reg))
        A.e("v_mov_b32 v49, v%d\nv_permlane32_swap_b32 v%d, v49\nv_add_f32 v%d, v%d, v49" % (reg, reg, reg, reg))
        A.e("s_lshl_b32 s9, s3, 6\nv_lshl_add_u32 v50, v3, 2, s9")
        A.e("ds_write_b32 v50, v%d offset:%d", reg, slot * 256)
        A.e("v_lshlrev_b32 v51, 2, v3")
        A.e("s_waitcnt lgkmcnt(0)\ns_barrier")
        for w in range(4): A.e("ds_read_b32 v%d, v51 offset:%d", 52 + w, slot * 256 + w * 64)
        A.e("s_waitcnt lgkmcnt(0)")
        A.e("v_add_f32 v52, v52, v53\nv_add_f32 v54, v54, v55\nv_add_f32 v%d, v52, v54" % reg)
    xreduce(48, 0)
    A.e("v_mul_f32 v48, 0x3a800000, v48")
    A.e("v_mov_b32 v49, v48")
    A.e("v_pk_add_f32 v[56:57], v[64:65], v[48:49] neg_lo:[0,1] neg_hi:[0,1]")
    A.e("v_pk_mul_f32 v[58:59], v[56:57], v[56:57]")
    for d in range(1, 32):
        A.e("v_pk_add_f32 v[56:57], v[%d:%d], v[48:49] neg_lo:[0,1] neg_hi:[0,1]", 64 + 2 * d, 65 + 2 * d)
        A.e("v_pk_fma_f32 v[58:59], v[56:57], v[56:57], v[58:59]")
    A.e("v_add_f32 v60, v58, v59")
    A.e("v_cvt_pk_bf16_f32 v61, v48, v48\nv_and_b32 v61, 0xffff0000, v61")
    xreduce(60, 1)
    A.e("v_mul_f32 v60, 0x3a800000, v60")
    A.e("v_cvt_pk_bf16_f32 v60, v60, v60\nv_and_b32 v60, 0xffff0000, v60")
    A.e("v_add_f32 v60, 0x3727c5ac, v60")
    A.e("v_cvt_pk_bf16_f32 v60, v60, v60\nv_and_b32 v60, 0xffff0000, v60")
    A.e("v_sqrt_f32 v60, v60")
    A.e("s_nop 0")
    A.e("v_cvt_pk_bf16_f32 v60, v60, v60\nv_and_b32 v60, 0xffff0000, v60")
    A.e("v_rcp_f32 v62, v60")
    A.e("s_nop 0")
    A.e("v_fma_f32 v63, -v60, v62, 1.0\nv_fma_f32 v62, v63, v62, v62")
    A.e("v_mov_b32 v63, v62\nv_mov_b32 v60, v61")
    for d in range(32):
        A.e("v_pk_add_f32 v[%d:%d], v[%d:%d], v[60:61] neg_lo:[0,1] neg_hi:[0,1]", 64 + 2 * d, 65 + 2 * d, 64 + 2 * d, 65 + 2 * d)
    for d in range(32):
        A.e("v_cvt_pk_bf16_f32 v%d, v%d, v%d", 16 + d, 64 + 2 * d, 65 + 2 * d)
    for d in range(32):
        A.e("v_lshlrev_b32 v%d, 16, v%d", 64 + 2 * d, 16 + d)
        A.e("v_and_b32 v%d, 0xffff0000, v%d", 65 + 2 * d, 16 + d)
    for d in range(32):
        A.e("v_pk_mul_f32 v[%d:%d], v[%d:%d], v[62:63]", 64 + 2 * d, 65 + 2 * d, 64 + 2 * d, 65 + 2 * d)
    for i in range(4):
        a0 = 8 * i; b0 = 8 * i + 4
        o = 128 + 8 * i
        for k, d in enumerate((a0, a0 + 1, b0, b0 + 1, a0 + 2, a0 + 3, b0 + 2, b0 + 3)):
            A.e("v_cvt_pk_bf16_f32 v%d, v%d, v%d", o + k, 64 + 2 * d, 65 + 2 * d)
        if i == 2: A.e("s_add_u32 s11, s11, 4096")
        A.e("buffer_store_dwordx4 v[%d:%d], v10, s[16:19], s11 offen offset:%d", o, o + 3, (i % 2) * 2048)
        A.e("buffer_store_dwordx4 v[%d:%d], v10, s[16:19], s11 offen offset:%d", o + 4, o + 7, (i % 2) * 2048 + 256)
    A.label("L_%s_done" % name)
    A.e("s_endpgm")
    return fix_hazards(A.L)
```

```python
from asmlib import *
from g1 import srd
from g1c import WS_ACT2, WS_PHIQ, WS_KVP, ACT2_KS

def o_body(name='o_kernel'):
    A = Asm()
    A.e("s_cmp_ge_u32 s2, 256\ns_cbranch_scc1 L_%s_done" % name)
    A.e("s_load_dwordx2 s[6:7], s[0:1], 80")
    A.e("v_lshrrev_b32 v2, 6, v0\nv_and_b32 v1, 63, v0")
    A.e("v_readfirstlane_b32 s3, v2")
    A.e("s_lshr_b32 s4, s2, 3\ns_and_b32 s4, s4, 7")
    A.e("s_and_b32 s5, s2, 7\ns_lshl_b32 s5, s5, 2\ns_lshr_b32 s8, s2, 6\ns_add_u32 s5, s5, s8")
    A.e("v_lshlrev_b32 v2, 4, v1")
    A.e("s_waitcnt lgkmcnt(0)")
    srd(A, 12, 6, 7, 32 * 8 * 12 * 1024, WS_KVP)
    srd(A, 16, 6, 7, 0x800000, WS_PHIQ)
    srd(A, 20, 6, 7, 128 * ACT2_KS * 1024, WS_ACT2)
    A.e("s_mul_i32 s8, s5, %d\ns_mul_i32 s9, s3, 3072\ns_add_u32 s8, s8, s9", 8 * 12 * 1024)
    for mm in range(8):
        for k in range(3):
            A.e("buffer_load_dwordx4 v[%d:%d], v2, s[12:15], s8 offen offset:%d", 32 + (mm * 3 + k) * 4, 35 + (mm * 3 + k) * 4, k * 1024)
        A.e("s_add_u32 s8, s8, %d", 12 * 1024)
    A.e("s_lshl_b32 s9, s5, 7\ns_lshl_b32 s10, s4, 4\ns_add_u32 s9, s9, s10\ns_lshl_b32 s10, s3, 2\ns_add_u32 s9, s9, s10\ns_lshl_b32 s9, s9, 11")
    for t in range(4):
        A.e("buffer_load_dwordx4 v[%d:%d], v2, s[16:19], s9 offen", 128 + 8 * t, 131 + 8 * t)
        A.e("buffer_load_dwordx4 v[%d:%d], v2, s[16:19], s9 offen offset:1024", 132 + 8 * t, 135 + 8 * t)
        A.e("s_add_u32 s9, s9, 2048")
    A.e("s_waitcnt vmcnt(8)")
    for mm in range(1, 8):
        for k in range(3):
            for r in (0, 2):
                A.e("v_pk_add_f32 v[%d:%d], v[%d:%d], v[%d:%d]", 32 + 4 * k + r, 33 + 4 * k + r, 32 + 4 * k + r, 33 + 4 * k + r,
                    32 + (mm * 3 + k) * 4 + r, 33 + (mm * 3 + k) * 4 + r)
    for k in range(3):
        A.e("v_cvt_pk_bf16_f32 v%d, v%d, v%d", 16 + 2 * k, 32 + 4 * k, 33 + 4 * k)
        A.e("v_cvt_pk_bf16_f32 v%d, v%d, v%d", 17 + 2 * k, 34 + 4 * k, 35 + 4 * k)
    A.e("v_lshlrev_b32 v3, 3, v1\ns_mul_i32 s9, s3, 1536\nv_add_u32 v4, s9, v3")
    for k in range(3): A.e("ds_write_b64 v4, v[%d:%d] offset:%d", 16 + 2 * k, 17 + 2 * k, k * 512)
    A.e("s_waitcnt lgkmcnt(0)\ns_barrier")
    def fr(sign, db): return 32 + 4 * (sign * 2 + db)
    for sign in range(2):
        for db in range(2):
            for fb in range(2):
                A.e("ds_read_b64 v[%d:%d], v3 offset:%d", fr(sign, db) + 2 * fb, fr(sign, db) + 2 * fb + 1, ((sign * 2 + fb) * 2 + db) * 512)
        for fb in range(2):
            A.e("ds_read_b64 v[%d:%d], v3 offset:%d", 48 + 4 * sign + 2 * fb, 49 + 4 * sign + 2 * fb, (8 + sign * 2 + fb) * 512)
    A.e("s_waitcnt vmcnt(0) lgkmcnt(0)")
    for t in range(4):
        P = 128 + 8 * t; D = 64 + 12 * t
        for db in range(2):
            A.e("v_mfma_f32_16x16x32_bf16 v[%d:%d], v[%d:%d], v[%d:%d], 0", D + 4 * db, D + 4 * db + 3, fr(0, db), fr(0, db) + 3, P, P + 3)
        A.e("v_mfma_f32_16x16x32_bf16 v[%d:%d], v[48:51], v[%d:%d], 0", D + 8, D + 11, P, P + 3)
    for t in range(4):
        P = 128 + 8 * t; D = 64 + 12 * t
        for db in range(2):
            A.e("v_mfma_f32_16x16x32_bf16 v[%d:%d], v[%d:%d], v[%d:%d], v[%d:%d]", D + 4 * db, D + 4 * db + 3, fr(1, db), fr(1, db) + 3, P + 4, P + 7, D + 4 * db, D + 4 * db + 3)
        A.e("v_mfma_f32_16x16x32_bf16 v[%d:%d], v[52:55], v[%d:%d], v[%d:%d]", D + 8, D + 11, P + 4, P + 7, D + 8, D + 11)
    A.e("s_lshl_b32 s9, s4, 4\ns_lshl_b32 s10, s3, 2\ns_add_u32 s9, s9, s10\ns_mul_i32 s9, s9, %d", ACT2_KS * 1024)
    A.e("s_add_u32 s10, s5, 112\ns_lshl_b32 s10, s10, 10\ns_add_u32 s9, s9, s10")
    for t in range(4):
        D = 64 + 12 * t
        A.e("v_add_f32 v%d, 0x358637bd, v%d", D + 8, D + 8)
    for t in range(4):
        D = 64 + 12 * t
        A.e("v_rcp_f32 v%d, v%d", D + 8, D + 8)
    for t in range(4):
        D = 64 + 12 * t
        for r in (0, 2, 4, 6):
            A.e("v_pk_mul_f32 v[%d:%d], v[%d:%d], v[%d:%d] op_sel_hi:[1,0]", D + r, D + r + 1, D + r, D + r + 1, D + 8, D + 9)
    for t in range(4):
        D = 64 + 12 * t
        for k in range(4): A.e("v_cvt_pk_bf16_f32 v%d, v%d, v%d", D + k, D + 2 * k, D + 2 * k + 1)
        A.e("buffer_store_dwordx4 v[%d:%d], v2, s[20:23], s9 offen", D, D + 3)
        A.e("s_add_u32 s9, s9, %d", ACT2_KS * 1024)
    A.label("L_%s_done" % name)
    A.e("s_endpgm")
    return fix_hazards(A.L)
```

```python
import sys; sys.path.insert(0, 'gen')
import g1 as G, g1d as GD, g1epi as E, kln, ko, kg2
def build(stamps=False, **kw):
    g = GD.G1D(stamps=stamps, epi=True)
    g2 = kg2.G2(stamps=stamps)
    ks = [('ln_kernel', kln.ln_body(), 160, 160, 128, 256, 512),
          (g.name, g.body(), 512, 256, 256, 256, E.L_XCH + 12288),
          ('o_kernel', ko.o_body(), 160, 160, 256, 256, 6144),
          (g2.name, g2.body(), 512, 256, 256, 256, g2.STG * g2.NB)]
    return G.make_file(ks)
HEADER = open('parallel_sum__linear_kernel_hedgehog__glu_gated_reglu__prompt.s.ref').read().split('; Override launch')[0]
if __name__ == '__main__':
    txt = build(stamps=(len(sys.argv) > 2))
    open(sys.argv[1], 'w').write(HEADER + txt)
```

```python
from asmlib import *
from g1 import srd
from g1c import WS_ACT2, WS_PART, WS_STAMP, ACT2_KS, merge_flat
from kln import WS_FLAG

class G2:
    def __init__(self, name='g2_kernel', stamps=False, XD=6, WL=3, trace=False, nomfma=False, nord=False, nox=False, now=False, xv=False):
        self.name = name; self.stamps = stamps; self.XD = XD; self.WL = WL
        self.NB = WL + 1; self.trace = trace; self.nomfma = nomfma; self.nord = nord; self.nox = nox; self.now = now; self.xv = xv
    STG = 16384
    S_WAVE = 3; S_MT = 4; S_NT = 5; S_SP = 6
    SRD_X = 8; SRD_W = 12; SRD_O = 16; SRD_P = 20; SRD_F = 24
    S_XOFF = 28; S_WOFF = 29; S_WB = 30; S_RB = 31; S_RD = 32; S_CNT = 33; S_WST = 34; S_SW = 35; S_KP = 36; S_KN = 37
    S_T0 = 64; S_T1 = 65; S_T2 = 66; S_WL = 67
    V_LANE = 1; V_L16 = 2; V_XO = [3, 4, 5, 6]; V_WO = 7; V_RA = [8, 9, 10, 11, 12, 13, 14, 15]
    def ACC(self, b, t): return 128 + (b * 4 + t) * 4
    def WF(self, st, b): return 64 + st * 32 + 4 * b
    def XF(self, slot, t): return (256 + slot * 16 + 4 * t) if not self.xv else (16 + (slot % 3) * 16 + 4 * t)

    def x_loads(self, slot):
        L = ["  buffer_load_dwordx4 %s, v%d, s[%d:%d], s%d offen" % (R(self.XF(slot, t), 4), self.V_XO[t], self.SRD_X, self.SRD_X + 3, self.S_XOFF) for t in range(4)]
        return [[x] for x in L] + [["  s_add_u32 s%d, s%d, 1024" % (self.S_XOFF, self.S_XOFF)]]
    def w_dma(self, half):
        G = []
        if half == 0:
            G.append(["  s_cmp_eq_u32 s%d, s%d" % (self.S_WST, self.S_SW),
                      "  s_cselect_b32 s%d, s46, s%d" % (self.SRD_W, self.SRD_W),
                      "  s_cselect_b32 s%d, s%d, s%d" % (self.SRD_W + 1, self.S_T2, self.SRD_W + 1),
                      "  s_cselect_b32 s%d, s%d, s%d" % (self.SRD_W + 2, self.S_WL, self.SRD_W + 2),
                      "  s_cselect_b32 s%d, s%d, s%d" % (self.S_WOFF, self.S_T1, self.S_WOFF)])
            G.append(["  s_add_u32 s%d, s%d, 1" % (self.S_WST, self.S_WST)])
        for k in range(2):
            first = (half == 0 and k == 0)
            G.append(["  s_add_u32 m0, s%d, s%d" % (self.S_WB, self.S_T0)] if first else ["  s_add_u32 m0, m0, 4096"])
            G.append(["  buffer_load_dwordx4 v%d, s[%d:%d], s%d offen lds" % (self.V_WO, self.SRD_W, self.SRD_W + 3, self.S_WOFF)])
            G.append(["  s_add_u32 s%d, s%d, %d" % (self.S_WOFF, self.S_WOFF, 16 * 2048)])
        if half == 1:
            G.append(["  s_add_u32 s%d, s%d, %d" % (self.S_WB, self.S_WB, self.STG),
                      "  s_cmp_eq_u32 s%d, %d" % (self.S_WB, self.STG * self.NB),
                      "  s_cselect_b32 s%d, 0, s%d" % (self.S_WB, self.S_WB)])
        return G
    def w_reads(self, st, u):
        out = []
        for b in range(8):
            for t in range(2):
                out.append(["  ds_read_b64_tr_b16 %s, v%d offset:%d" % (vr(self.WF(st, b) + 2 * t, 2), self.V_RA[b], (32 * u + 16 * t) * 256)])
        return out
    def adv_read(self):
        out = [["  s_add_u32 s%d, s%d, %d" % (self.S_RB, self.S_RB, self.STG),
                "  s_cmp_eq_u32 s%d, %d" % (self.S_RB, self.STG * self.NB),
                "  s_cselect_b32 s%d, 0, s%d" % (self.S_RB, self.S_RB),
                "  s_cselect_b32 s%d, s%d, s%d" % (self.S_RD, self.S_KN, self.S_KP)]]
        out += [["  v_add_u32 v%d, s%d, v%d" % (r_, self.S_RD, r_)] for r_ in self.V_RA]
        return out
    def mfmas(self, st, slot):
        M = []
        for b in range(8):
            for t in (range(4) if b % 2 == 0 else range(3, -1, -1)):
                acc = vr(self.ACC(b, t), 4)
                M.append("  v_mfma_f32_16x16x32_bf16 %s, %s, %s, %s" % (acc, vr(self.WF(st, b), 4), R(self.XF(slot, t), 4), acc))
        return M

    def step(self, i, extra):
        XD, WL = self.XD, self.WL
        st = i & 1
        out = []
        nX = 26 if False else (XD - 2) * 6 + 2
        if st == 1:
            nW = (2 * WL - 3) * 6
            out.append("  s_waitcnt vmcnt(%d) lgkmcnt(0)" % min(nX, nW))
            out.append("  s_barrier")
            rd = self.adv_read() + self.w_reads(0, 0)
        else:
            out.append("  s_waitcnt vmcnt(%d) lgkmcnt(0)" % nX)
            rd = self.w_reads(1, 1)
        vm = self.x_loads((i + XD - 1) % XD) + self.w_dma(st)
        if st == 1:
            adv = rd[:9]; rest = rd[9:]
            fill = adv + merge_flat(rest, vm)
        else:
            fill = merge_flat(rd, vm)
        fill = [x for g_ in fill for x in g_] + extra
        if self.nord: fill = [x for x in fill if 'ds_read' not in x]
        if self.nox: fill = [x for x in fill if not ('buffer_load' in x and 'lds' not in x)]
        if self.now: fill = [x for x in fill if not ('buffer_load' in x and 'lds' in x)]
        mm = self.mfmas(st, i % XD)
        if self.nomfma: mm = ["  s_nop 0" for _ in mm]
        return out + weave(mm, fill, first=0, last=31)

    def body(self):
        A = Asm(); nm = self.name
        XD, WL = self.XD, self.WL
        A.e("s_cmp_ge_u32 s2, 256\ns_cbranch_scc1 L_%s_done" % nm)
        if self.stamps: A.e("s_memrealtime s[96:97]")
        A.e("s_load_dwordx16 s[40:55], s[0:1], 0")
        A.e("s_load_dwordx4 s[56:59], s[0:1], 64")
        A.e("s_load_dwordx2 s[60:61], s[0:1], 80")
        A.e("v_lshrrev_b32 v16, 6, v0\nv_and_b32 v1, 63, v0")
        A.e("v_readfirstlane_b32 s3, v16")
        A.e("s_and_b32 s6, s2, 3")
        A.e("s_bfe_u32 s4, s2, 0x10002\ns_lshl_b32 s4, s4, 2\ns_bfe_u32 s7, s2, 0x20003\ns_add_u32 s4, s4, s7")
        A.e("s_lshr_b32 s5, s2, 5")
        A.e("v_lshlrev_b32 v2, 4, v1")
        for t in range(4):
            if t == 0: A.e("v_mov_b32 v%d, v2", self.V_XO[0])
            else: A.e("v_add_u32 v%d, 0x%x, v2", self.V_XO[t], t * ACT2_KS * 1024)
        A.e("v_lshrrev_b32 v16, 4, v1")
        A.e("s_and_b32 s7, s3, 1\ns_lshl_b32 s7, s7, 2")
        A.e("v_add_u32 v17, s7, v16")
        A.e("v_bfe_u32 v18, v1, 1, 3")
        A.e("v_xor_b32 v18, v18, v17")
        A.e("v_and_b32 v19, 1, v1")
        A.e("v_lshl_add_u32 v18, v18, 1, v19")
        A.e("v_lshlrev_b32 v18, 4, v18")
        A.e("v_lshl_add_u32 v18, v16, 11, v18")
        A.e("s_lshl_b32 s7, s5, 8")
        A.e("v_add_u32 v%d, s7, v18", self.V_WO)
        A.e("v_lshrrev_b32 v16, 4, v1\nv_bfe_u32 v17, v1, 2, 2\nv_lshl_add_u32 v18, v16, 2, v17")
        A.e("v_and_b32 v19, 7, v18")
        A.e("v_lshlrev_b32 v18, 8, v18\nv_and_b32 v20, 3, v1\nv_lshl_add_u32 v18, v20, 3, v18")
        for b in range(8):
            A.e("v_xor_b32 v20, %d, v19\nv_lshl_add_u32 v%d, v20, 5, v18", b, self.V_RA[b])
        A.e("s_waitcnt lgkmcnt(0)")
        srd(A, self.SRD_X, 60, 61, 128 * ACT2_KS * 1024, WS_ACT2)
        srd(A, self.SRD_W, 54, 55, 3584 * 2048)
        A.e("s_lshl_b32 s7, s4, 4\ns_lshl_b32 s%d, s3, 2\ns_add_u32 s7, s7, s%d\ns_mul_i32 s7, s7, %d", self.S_T0, self.S_T0, ACT2_KS)
        A.e("s_mul_i32 s%d, s6, 36\ns_add_u32 s7, s7, s%d\ns_lshl_b32 s%d, s7, 10", self.S_T0, self.S_T0, self.S_XOFF)
        A.e("s_mul_i32 s7, s6, %d\ns_lshl_b32 s%d, s3, 13\ns_add_u32 s%d, s7, s%d", 36 * 32 * 2048, self.S_T1, self.S_WOFF, self.S_T1)
        A.e("s_cmp_eq_u32 s6, 3\ns_cselect_b32 s%d, 2, 99", self.S_SW)
        A.e("s_and_b32 s%d, s47, 0xffff\ns_mov_b32 s%d, %d", self.S_T2, self.S_WL, 1024 * 2048)
        A.e("s_lshl_b32 s%d, s3, 10", self.S_T0)
        A.e("s_mov_b32 s%d, 0\ns_mov_b32 s%d, 0\ns_mov_b32 s%d, 0", self.S_WB, self.S_RB, self.S_WST)
        A.e("s_mov_b32 s%d, %d\ns_mov_b32 s%d, 0x%x", self.S_KP, self.STG, self.S_KN, (-(self.NB - 1) * self.STG) & 0xffffffff)
        nvm = 0
        for i in range(-2 * WL, 0):
            xi = i + XD - 1
            if xi >= 0:
                for g_ in self.x_loads(xi % XD): A.ext(g_)
            for g_ in self.w_dma(i & 1): A.ext(g_)
        if XD - 1 > 2 * WL: raise AssertionError("XD too large for prologue")
        for k in range(128, 256): A.e("v_mov_b32 v%d, 0", k)
        after = 0
        for i in range(-2 * WL + 2, 0): after += 2 + (4 if i + XD - 1 >= 0 else 0)
        A.e("s_waitcnt vmcnt(%d)\ns_barrier", after)
        for g_ in self.w_reads(0, 0): A.ext(g_)
        nit = 36 // XD
        A.e("s_mov_b32 s%d, %d", self.S_CNT, nit)
        if self.stamps: A.e("s_memtime s[86:87]\ns_memrealtime s[92:93]")
        A.L.append(".p2align 6")
        A.label("L_%s_loop" % nm)
        for i in range(XD):
            if self.trace:
                A.e("s_mov_b32 s81, m0\ns_memrealtime s[98:99]\ns_waitcnt lgkmcnt(0)\ns_mul_i32 s80, s%d, %d\ns_sub_u32 s80, %d, s80\ns_mov_b32 m0, s80" % (self.S_CNT, XD, 36 + i))
                A.e("s_nop 3\nv_writelane_b32 v60, s98, m0\ns_mov_b32 m0, s81")
            extra = ["  s_sub_u32 s%d, s%d, 1" % (self.S_CNT, self.S_CNT), "  s_cmp_lg_u32 s%d, 0" % self.S_CNT] if i == XD - 1 else []
            A.ext(self.step(i, extra))
        A.e("s_cbranch_scc1 L_%s_loop", nm)
        if self.stamps: A.e("s_memtime s[88:89]\ns_memrealtime s[94:95]\ns_waitcnt lgkmcnt(0)\ns_sub_u32 s88, s88, s86")
        A.e("s_waitcnt vmcnt(0) lgkmcnt(0)\ns_nop 7")
        if self.trace:
            srd(A, 16, 60, 61, 0x100000, WS_STAMP + 0x40000)
            A.e("s_mul_i32 s64, s2, 4\ns_add_u32 s64, s64, s3\ns_lshl_b32 s64, s64, 8\nv_lshlrev_b32 v17, 2, v1")
            A.e("buffer_store_dword v60, v17, s[16:19], s64 offen\ns_waitcnt vmcnt(0)")
        self.epilogue(A)
        if self.stamps: self.store_stamp(A)
        A.label("L_%s_done" % nm)
        A.e("s_endpgm")
        return fix_hazards(A.L)

    def epilogue(self, A):
        nm = self.name
        P = self.SRD_P; F = self.SRD_F
        srd(A, P, 60, 61, 64 * 16 * 4 * 8 * 1024, WS_PART)
        srd(A, F, 60, 61, 64 * 128, WS_FLAG)
        A.e("s_lshl_b32 s%d, s4, 3\ns_add_u32 s%d, s%d, s5", self.S_T0, self.S_T0, self.S_T0)
        A.e("s_lshl_b32 s%d, s%d, 4\ns_add_u32 s%d, s%d, s6\ns_lshl_b32 s%d, s%d, 2\ns_add_u32 s%d, s%d, s3\ns_lshl_b32 s%d, s%d, 13",
            self.S_T1, self.S_T0, self.S_T1, self.S_T1, self.S_T1, self.S_T1, self.S_T1, self.S_T1, self.S_T1, self.S_T1)
        for o in range(4):
            A.e("s_cmp_eq_u32 s6, %d\ns_cbranch_scc1 L_%s_skip%d", o, nm, o)
            for k in range(8):
                b, t = 2 * o + k // 4, k % 4
                if k == 4: A.e("s_add_u32 s%d, s%d, 4096", self.S_T2, self.S_T1)
                A.e("buffer_store_dwordx4 %s, v2, s[%d:%d], s%d offen offset:%d sc1", vr(self.ACC(b, t), 4), P, P + 3, self.S_T1 if k < 4 else self.S_T2, (k % 4) * 1024)
            A.label("L_%s_skip%d" % (nm, o))
            A.e("s_add_u32 s%d, s%d, %d", self.S_T1, self.S_T1, 4 * 4 * 8192)
        if self.stamps: A.e("s_memrealtime s[72:73]")
        for o in range(4):
            A.e("s_cmp_eq_u32 s6, %d\ns_cbranch_scc0 L_%s_own%d", o, nm, o)
            for k in range(8):
                b, t = 2 * o + k // 4, k % 4
                for r_ in range(4): A.e("v_mov_b32 v%d, v%d", 16 + 4 * k + r_, self.ACC(b, t) + r_)
            A.label("L_%s_own%d" % (nm, o))
        srd(A, self.SRD_X, 40, 41, 2048 * 2048)
        srd(A, self.SRD_O, 56, 57, 2048 * 2048)
        A.e("v_and_b32 v48, 15, v1\nv_lshlrev_b32 v48, 11, v48")
        A.e("v_bfe_u32 v49, v1, 4, 1\nv_lshl_add_u32 v48, v49, 5, v48")
        A.e("v_lshrrev_b32 v49, 5, v1\nv_lshl_add_u32 v48, v49, 4, v48")
        A.e("s_lshl_b32 s%d, s4, 8\ns_lshl_b32 s%d, s3, 6\ns_add_u32 s%d, s%d, s%d\ns_lshl_b32 s%d, s%d, 11",
            self.S_T1, self.S_T2, self.S_T1, self.S_T1, self.S_T2, self.S_T1, self.S_T1)
        A.e("s_lshl_b32 s%d, s5, 8\ns_add_u32 s%d, s%d, s%d\ns_lshl_b32 s%d, s6, 6\ns_add_u32 s%d, s%d, s%d",
            self.S_T2, self.S_T1, self.S_T1, self.S_T2, self.S_T2, self.S_T1, self.S_T1, self.S_T2)
        A.e("s_mov_b32 s%d, s%d", self.S_XOFF, self.S_T1)
        for t in range(4):
            A.e("buffer_load_dwordx4 v[%d:%d], v48, s[%d:%d], s%d offen", 112 + 4 * t, 115 + 4 * t, self.SRD_X, self.SRD_X + 3, self.S_T1)
            A.e("s_add_u32 s%d, s%d, %d", self.S_T1, self.S_T1, 16 * 2048)
        A.e("s_waitcnt vmcnt(4)")
        if self.stamps: A.e("s_memrealtime s[74:75]")
        A.e("s_barrier")
        A.e("s_cmp_eq_u32 s3, 0\ns_cbranch_scc0 L_%s_nopub", nm)
        A.e("s_lshl_b32 s%d, s%d, 7", self.S_T2, self.S_T0)
        A.e("v_mov_b32 v50, 1\nv_mov_b32 v51, 0")
        A.e("s_mov_b64 s[68:69], exec\ns_mov_b64 exec, 1")
        A.e("buffer_atomic_add v50, v51, s[%d:%d], s%d offen sc1", F, F + 3, self.S_T2)
        A.label("L_%s_poll" % nm)
        A.e("buffer_load_dword v52, v51, s[%d:%d], s%d offen sc1", F, F + 3, self.S_T2)
        A.e("s_waitcnt vmcnt(0)")
        A.e("v_readfirstlane_b32 s70, v52")
        A.e("s_cmp_ge_u32 s70, 4\ns_cbranch_scc1 L_%s_polled", nm)
        A.e("s_sleep 1\ns_branch L_%s_poll", nm)
        A.label("L_%s_polled" % nm)
        A.e("s_mov_b64 exec, s[68:69]")
        A.label("L_%s_nopub" % nm)
        A.e("s_barrier")
        if self.stamps: A.e("s_memrealtime s[76:77]")
        A.e("s_lshl_b32 s%d, s%d, 2\ns_add_u32 s%d, s%d, s6\ns_lshl_b32 s%d, s%d, 4\ns_add_u32 s%d, s%d, s3\ns_lshl_b32 s%d, s%d, 13",
            self.S_T1, self.S_T0, self.S_T1, self.S_T1, self.S_T1, self.S_T1, self.S_T1, self.S_T1, self.S_T1, self.S_T1)
        for k3 in range(3):
            A.e("s_add_u32 s%d, s6, %d\ns_and_b32 s%d, s%d, 3\ns_lshl_b32 s%d, s%d, 15\ns_add_u32 s%d, s%d, s%d",
                self.S_T2, k3 + 1, self.S_T2, self.S_T2, self.S_T2, self.S_T2, self.S_T2, self.S_T2, self.S_T1)
            for k in range(8):
                if k == 4: A.e("s_add_u32 s%d, s%d, 4096", self.S_T2, self.S_T2)
                A.e("buffer_load_dwordx4 v[%d:%d], v2, s[%d:%d], s%d offen offset:%d sc1", 128 + 32 * k3 + 4 * k, 131 + 32 * k3 + 4 * k, P, P + 3, self.S_T2, (k % 4) * 1024)
        for k3 in range(3):
            A.e("s_waitcnt vmcnt(%d)", 16 - 8 * k3)
            for k in range(8):
                for r_ in (0, 2):
                    A.e("v_pk_add_f32 v[%d:%d], v[%d:%d], v[%d:%d]", 16 + 4 * k + r_, 17 + 4 * k + r_, 16 + 4 * k + r_, 17 + 4 * k + r_,
                        128 + 32 * k3 + 4 * k + r_, 129 + 32 * k3 + 4 * k + r_)
        if self.stamps: A.e("s_memrealtime s[78:79]\ns_waitcnt lgkmcnt(0)")
        for t in range(4):
            b0 = 16 + 4 * t; b1 = 32 + 4 * t
            for r_ in range(4): A.e("v_permlane16_swap_b32 v%d, v%d", b0 + r_, b1 + r_)
        for t in range(4):
            b0 = 16 + 4 * t; b1 = 32 + 4 * t; xr = 112 + 4 * t
            for d in range(4):
                src = b0 + 2 * d if d < 2 else b1 + 2 * (d - 2)
                A.e("v_lshlrev_b32 v64, 16, v%d\nv_and_b32 v65, 0xffff0000, v%d", xr + d, xr + d)
                A.e("v_pk_add_f32 v[%d:%d], v[%d:%d], v[64:65]", src, src + 1, src, src + 1)
                A.e("v_cvt_pk_bf16_f32 v%d, v%d, v%d", 68 + 4 * t + d, src, src + 1)
            A.e("buffer_store_dwordx4 v[%d:%d], v48, s[%d:%d], s%d offen", 68 + 4 * t, 71 + 4 * t, self.SRD_O, self.SRD_O + 3, self.S_XOFF)
            A.e("s_add_u32 s%d, s%d, %d", self.S_XOFF, self.S_XOFF, 16 * 2048)

    def store_stamp(self, A):
        A.e("s_waitcnt vmcnt(0)\ns_memrealtime s[98:99]\ns_waitcnt lgkmcnt(0)")
        srd(A, 16, 60, 61, 0x100000, WS_STAMP + 0x10000)
        A.e("s_mul_i32 s64, s2, 4\ns_add_u32 s64, s64, s3\ns_lshl_b32 s64, s64, 5")
        A.e("v_mov_b32 v20, s88\nv_mov_b32 v21, s92\nv_mov_b32 v22, s94\nv_mov_b32 v23, s96\nv_mov_b32 v17, 0\nv_mov_b32 v24, s98")
        A.e("v_cmp_eq_u32 vcc, 0, v1\ns_and_saveexec_b64 s[90:91], vcc")
        A.e("buffer_store_dwordx4 v[20:23], v17, s[16:19], s64 offen\nbuffer_store_dword v24, v17, s[16:19], s64 offen offset:16")
        A.e("v_mov_b32 v28, s72\nv_mov_b32 v29, s74\nv_mov_b32 v30, s76\nv_mov_b32 v31, s78")
        A.e("s_add_u32 s64, s64, 0x8000\nbuffer_store_dwordx4 v[28:31], v17, s[16:19], s64 offen")
        A.e("s_mov_b64 exec, s[90:91]")
```

```python
from asmlib import *
from g1 import srd
from g1c import WS_ACT2, WS_PART, WS_STAMP, ACT2_KS, merge_flat

WS_FLAG = 0x3000000
F_HEAD = 0
F_HRDY = 32 * 128
F_ORDY = 48 * 128
F_XCH = 64 * 128
N_FLAGS = 192
SPIN_MAX = 1 << 20

def poll(A, lab, srd_, soff, target, vtmp=52, vz=51, stmp=70, scnt=71):
    A.e("s_mov_b32 s%d, 0", scnt)
    A.label(lab)
    A.e("buffer_load_dword v%d, v%d, s[%d:%d], s%d offen sc1", vtmp, vz, srd_, srd_ + 3, soff)
    A.e("s_waitcnt vmcnt(0)")
    A.e("v_readfirstlane_b32 s%d, v%d", stmp, vtmp)
    A.e("s_add_u32 s%d, s%d, 1", scnt, scnt)
    A.e("s_cmp_ge_u32 s%d, %d\ns_cbranch_scc1 %s_ok", stmp, target, lab)
    A.e("s_cmp_ge_u32 s%d, %d\ns_cbranch_scc1 %s_ok", scnt, SPIN_MAX, lab)
    A.e("s_sleep 1\ns_branch %s", lab)
    A.label(lab + "_ok")

class G2B:
    def __init__(self, name='g2_kernel', stamps=False, XD=8, WL=4, fused=False, sc1x=False, pf=False):
        self.name = name; self.stamps = stamps; self.XD = XD; self.WL = WL; self.NB = WL + 1
        self.fused = fused; self.sc1x = sc1x or fused; self.pf = pf
    STG = 16384
    NSTEP = 72
    S_WAVE = 3; S_MT = 4; S_NT = 5; S_SP = 6
    SRD_X = 8; SRD_W = 12; SRD_O = 16; SRD_P = 20; SRD_F = 24
    S_XOFF = 28; S_WOFF = 29; S_WB = 30; S_RB = 31; S_RD = 32; S_CNT = 33; S_KP = 36; S_KN = 37
    S_XJ = 34; S_OF = 35
    S_T0 = 64; S_T1 = 65; S_T2 = 66; S_WL = 67; S_LD = 68; S_T3 = 69
    V_LANE = 1; V_L16 = 2; V_XO = [2, 3]; V_WO = 7; V_RA = [8, 9, 10, 11, 12, 13, 14, 15]; V_F = 4; V_Z = 5
    def ACC(self, b, t): return 192 + (b * 2 + t) * 4
    def WF(self, st, b): return 128 + st * 32 + 4 * b
    def XF(self, slot, t): return 256 + 192 + slot * 8 + 4 * t

    def x_loads(self, slot):
        sc = " sc1" if self.sc1x else ""
        return [["  buffer_load_dwordx4 %s, v%d, s[%d:%d], s%d offen%s" % (R(self.XF(slot, t), 4), self.V_XO[t], self.SRD_X, self.SRD_X + 3, self.S_XOFF, sc)] for t in range(2)] + \
               [["  s_add_u32 s%d, s%d, 1024" % (self.S_XOFF, self.S_XOFF)]]
    def w_dma(self, half):
        G = []
        for k in range(2):
            first = (half == 0 and k == 0)
            G.append(["  s_add_u32 m0, s%d, s%d" % (self.S_WB, self.S_LD)] if first else ["  s_add_u32 m0, m0, 4096"])
            G.append(["  buffer_load_dwordx4 v%d, s[%d:%d], s%d offen lds" % (self.V_WO, self.SRD_W, self.SRD_W + 3, self.S_WOFF)])
            G.append(["  s_add_u32 s%d, s%d, %d" % (self.S_WOFF, self.S_WOFF, 16 * 2048)])
        if half == 1:
            G.append(["  s_add_u32 s%d, s%d, %d" % (self.S_WB, self.S_WB, self.STG),
                      "  s_cmp_eq_u32 s%d, %d" % (self.S_WB, self.STG * self.NB),
                      "  s_cselect_b32 s%d, 0, s%d" % (self.S_WB, self.S_WB)])
        return G
    def w_reads(self, st, u):
        out = []
        for b in range(8):
            for t in range(2):
                out.append(["  ds_read_b64_tr_b16 %s, v%d offset:%d" % (vr(self.WF(st, b) + 2 * t, 2), self.V_RA[b], (32 * u + 16 * t) * 256)])
        return out
    def adv_read(self):
        out = [["  s_add_u32 s%d, s%d, %d" % (self.S_RB, self.S_RB, self.STG),
                "  s_cmp_eq_u32 s%d, %d" % (self.S_RB, self.STG * self.NB),
                "  s_cselect_b32 s%d, 0, s%d" % (self.S_RB, self.S_RB),
                "  s_cselect_b32 s%d, s%d, s%d" % (self.S_RD, self.S_KN, self.S_KP)]]
        out += [["  v_add_u32 v%d, s%d, v%d" % (r_, self.S_RD, r_)] for r_ in self.V_RA]
        return out
    def mfmas(self, st, slot):
        M = []
        for b in range(8):
            for t in ((0, 1) if b % 2 == 0 else (1, 0)):
                acc = vr(self.ACC(b, t), 4)
                M.append("  v_mfma_f32_16x16x32_bf16 %s, %s, %s, %s" % (acc, vr(self.WF(st, b), 4), R(self.XF(slot, t), 4), acc))
        return M

    def vm_tags(self, i):
        p = i % self.XD
        t = []
        if self.fused and p == 0: t.append(('F', i // self.XD))
        t += [('X', i + self.XD - 1)] * 2
        t += [('W', i // 2 + self.WL)] * 2
        return t
    def wait_count(self, i):
        q = [('X', k) for k in range(self.XD - 1) for _ in range(2)]
        for s_ in range(i): q += self.vm_tags(s_)
        need = [('X', i)]
        if i % 2 == 1: need.append(('W', (i + 1) // 2))
        if self.fused and i % self.XD == 0 and i > 0: need.append(('F', i // self.XD - 1))
        n = 63
        for nd in need:
            idx = [k for k, t in enumerate(q) if t == nd]
            if idx: n = min(n, len(q) - 1 - idx[-1])
        return n

    def special(self, p):
        G = []
        if p == 0:
            it_sw = (2 * (28 - self.WL)) // self.XD
            assert (2 * (28 - self.WL)) % self.XD == 0
            G.append(["  s_cmp_eq_u32 s%d, %d" % (self.S_CNT, 9 - it_sw),
                      "  s_cselect_b32 s%d, s46, s%d" % (self.SRD_W, self.SRD_W),
                      "  s_cselect_b32 s%d, s%d, s%d" % (self.SRD_W + 1, self.S_T2, self.SRD_W + 1),
                      "  s_cselect_b32 s%d, s%d, s%d" % (self.SRD_W + 2, self.S_WL, self.SRD_W + 2),
                      "  s_cselect_b32 s%d, s%d, s%d" % (self.S_WOFF, self.S_T1, self.S_WOFF)])
        if p == (56 - (self.XD - 1)) % self.XD:
            G.append(["  s_cmp_eq_u32 s%d, %d" % (self.S_CNT, 9 - (56 - self.XD + 1) // self.XD),
                      "  s_cselect_b32 s%d, s%d, 0" % (self.S_T3, self.S_XJ),
                      "  s_add_u32 s%d, s%d, s%d" % (self.S_XOFF, self.S_XOFF, self.S_T3)])
            G.append(["  s_cmp_eq_u32 s%d, %d" % (self.S_CNT, 9 - (72 - self.XD + 1) // self.XD),
                      "  s_cselect_b32 s%d, 0x7f000000, s%d" % (self.S_XOFF, self.S_XOFF)])
        return G

    def step(self, A, p, nwait, extra, tagname):
        XD = self.XD
        st = p & 1
        if st == 1:
            A.e("s_waitcnt vmcnt(%d) lgkmcnt(0)\ns_barrier", nwait)
            rd = self.adv_read() + self.w_reads(0, 0)
        else:
            A.e("s_waitcnt vmcnt(%d) lgkmcnt(0)", nwait)
            rd = self.w_reads(1, 1)
        pre = []
        if self.fused and p == 0:
            lab = "L_%s_%s_of" % (self.name, tagname)
            if tagname != 'peel':
                A.e("v_readfirstlane_b32 s70, v%d", self.V_F)
                A.e("s_cmp_eq_u32 s%d, %d\ns_cbranch_scc0 %s_ok", self.S_CNT, 9 - 6, lab)
                A.e("s_cmp_ge_u32 s70, 16\ns_cbranch_scc1 %s_ok", lab)
                A.e("s_mov_b32 s71, 0")
                A.label(lab)
                A.e("buffer_load_dword v%d, v%d, s[%d:%d], s%d offen sc1\ns_waitcnt vmcnt(0)\nv_readfirstlane_b32 s70, v%d" % (self.V_F, self.V_Z, self.SRD_F, self.SRD_F + 3, self.S_OF, self.V_F))
                A.e("s_add_u32 s71, s71, 1\ns_cmp_ge_u32 s70, 16\ns_cbranch_scc1 %s_ok\ns_cmp_ge_u32 s71, %d\ns_cbranch_scc1 %s_ok\ns_sleep 1\ns_branch %s", lab, SPIN_MAX, lab, lab)
                A.label(lab + "_ok")
            pre = [["  buffer_load_dword v%d, v%d, s[%d:%d], s%d offen sc1" % (self.V_F, self.V_Z, self.SRD_F, self.SRD_F + 3, self.S_OF)]]
        vm = pre + self.special(p) + self.x_loads((p + XD - 1) % XD) + self.w_dma(st)
        if st == 1:
            fill = rd[:9] + merge_flat(rd[9:], vm)
        else:
            fill = merge_flat(rd, vm)
        fill = [x for g_ in fill for x in g_] + extra
        A.ext(weave(self.mfmas(st, p % XD), fill, first=0, last=16))

    def setup(self, A):
        A.e("s_and_b32 s6, s2, 1")
        A.e("s_bfe_u32 s4, s2, 0x20001\ns_lshl_b32 s4, s4, 2\ns_bfe_u32 s7, s2, 0x20003\ns_add_u32 s4, s4, s7")
        A.e("s_lshr_b32 s5, s2, 5")
        A.e("v_lshlrev_b32 v2, 4, v1")
        A.e("v_add_u32 v3, 0x%x, v2", ACT2_KS * 1024)
        A.e("v_mov_b32 v%d, 0", self.V_Z)
        A.e("v_lshrrev_b32 v16, 4, v1")
        A.e("s_and_b32 s7, s3, 1\ns_lshl_b32 s7, s7, 2")
        A.e("v_add_u32 v17, s7, v16")
        A.e("v_bfe_u32 v18, v1, 1, 3")
        A.e("v_xor_b32 v18, v18, v17")
        A.e("v_and_b32 v19, 1, v1")
        A.e("v_lshl_add_u32 v18, v18, 1, v19")
        A.e("v_lshlrev_b32 v18, 4, v18")
        A.e("v_lshl_add_u32 v18, v16, 11, v18")
        A.e("s_lshl_b32 s7, s5, 8")
        A.e("v_add_u32 v%d, s7, v18", self.V_WO)
        A.e("v_lshrrev_b32 v16, 4, v1\nv_bfe_u32 v17, v1, 2, 2\nv_lshl_add_u32 v18, v16, 2, v17")
        A.e("v_and_b32 v19, 7, v18")
        A.e("v_lshlrev_b32 v18, 8, v18\nv_and_b32 v20, 3, v1\nv_lshl_add_u32 v18, v20, 3, v18")
        for b in range(8):
            A.e("v_xor_b32 v20, %d, v19\nv_lshl_add_u32 v%d, v20, 5, v18", b, self.V_RA[b])
        srd(A, self.SRD_X, 60, 61, 128 * ACT2_KS * 1024, WS_ACT2)
        srd(A, self.SRD_W, 54, 55, 3584 * 2048)
        srd(A, self.SRD_F, 60, 61, N_FLAGS * 128, WS_FLAG)
        A.e("s_lshl_b32 s7, s4, 3\ns_lshl_b32 s%d, s3, 1\ns_add_u32 s7, s7, s%d\ns_mul_i32 s7, s7, %d", self.S_T0, self.S_T0, ACT2_KS)
        A.e("s_mul_i32 s%d, s6, 56\ns_add_u32 s7, s7, s%d\ns_lshl_b32 s%d, s7, 10", self.S_T0, self.S_T0, self.S_XOFF)
        A.e("s_mul_i32 s%d, s6, 40\ns_sub_u32 s%d, 56, s%d\ns_lshl_b32 s%d, s%d, 10", self.S_T0, self.S_XJ, self.S_T0, self.S_XJ, self.S_XJ)
        A.e("s_lshl_b32 s%d, s3, 13", self.S_T0)
        A.e("s_mul_i32 s7, s6, %d\ns_add_u32 s%d, s7, s%d", 1792 * 2048, self.S_WOFF, self.S_T0)
        A.e("s_mul_i32 s7, s6, %d\ns_add_u32 s%d, s7, s%d", 512 * 2048, self.S_T1, self.S_T0)
        A.e("s_and_b32 s%d, s47, 0xffff\ns_mov_b32 s%d, %d", self.S_T2, self.S_WL, 1024 * 2048)
        A.e("s_lshl_b32 s%d, s3, 10", self.S_LD)
        A.e("s_mov_b32 s%d, 0\ns_mov_b32 s%d, 0", self.S_WB, self.S_RB)
        A.e("s_mov_b32 s%d, %d\ns_mov_b32 s%d, 0x%x", self.S_KP, self.STG, self.S_KN, (-(self.NB - 1) * self.STG) & 0xffffffff)
        A.e("s_lshr_b32 s7, s4, 1\ns_lshl_b32 s7, s7, 1\ns_add_u32 s7, s7, s6\ns_lshl_b32 s7, s7, 7\ns_add_u32 s%d, s7, %d", self.S_OF, F_ORDY)

    def w_prologue(self, A):
        for c in range(self.WL):
            for half in range(2):
                for g_ in self.w_dma(half):
                    A.ext(g_)
    def x_prologue(self, A):
        for k in range(self.XD - 1):
            for g_ in self.x_loads(k): A.ext(g_)
        for k in range(192, 256): A.e("v_mov_b32 v%d, 0", k)

    def loop(self, A):
        nm = self.name; XD = self.XD
        for g_ in self.w_reads(0, 0): A.ext(g_)
        A.e("s_mov_b32 s%d, 9", self.S_CNT)
        if self.stamps: A.e("s_memtime s[86:87]\ns_memrealtime s[92:93]")
        dec = ["  s_sub_u32 s%d, s%d, 1" % (self.S_CNT, self.S_CNT), "  s_cmp_lg_u32 s%d, 0" % self.S_CNT]
        for p in range(XD):
            self.step(A, p, self.wait_count(p), dec if p == XD - 1 else [], 'peel')
        A.L.append(".p2align 6")
        A.label("L_%s_loop" % nm)
        for p in range(XD):
            n = min(self.wait_count(it * XD + p) for it in range(1, 9))
            self.step(A, p, n, dec if p == XD - 1 else [], 'loop')
        A.e("s_cbranch_scc1 L_%s_loop", nm)
        if self.stamps: A.e("s_memtime s[88:89]\ns_memrealtime s[94:95]\ns_waitcnt lgkmcnt(0)\ns_sub_u32 s88, s88, s86")
        A.e("s_waitcnt lgkmcnt(0)\ns_nop 7")

    def epilogue(self, A):
        nm = self.name
        P = self.SRD_P; F = self.SRD_F
        srd(A, P, 60, 61, 128 * 2 * 4 * 8 * 1024, WS_PART)
        A.e("s_lshl_b32 s%d, s4, 3\ns_add_u32 s%d, s%d, s5", self.S_T0, self.S_T0, self.S_T0)
        A.e("s_lshl_b32 s%d, s%d, 1\ns_add_u32 s%d, s%d, s6\ns_lshl_b32 s%d, s%d, 2\ns_add_u32 s%d, s%d, s3\ns_lshl_b32 s%d, s%d, 13",
            self.S_T1, self.S_T0, self.S_T1, self.S_T1, self.S_T1, self.S_T1, self.S_T1, self.S_T1, self.S_T1, self.S_T1)
        A.e("s_add_u32 s%d, s%d, 4096", self.S_T2, self.S_T1)
        A.e("s_cmp_eq_u32 s6, 0\ns_cbranch_scc0 L_%s_sp1", nm)
        for sp in range(2):
            if sp == 1: A.label("L_%s_sp1" % nm)
            send = range(4, 8) if sp == 0 else range(0, 4); keep = range(0, 4) if sp == 0 else range(4, 8)
            k = 0
            for b in send:
                for t in range(2):
                    A.e("buffer_store_dwordx4 %s, v2, s[%d:%d], s%d offen offset:%d sc1", vr(self.ACC(b, t), 4), P, P + 3, self.S_T1 if k < 4 else self.S_T2, (k % 4) * 1024)
                    k += 1
            k = 0
            for b in keep:
                for t in range(2):
                    for r_ in range(4): A.e("v_mov_b32 v%d, v%d", 16 + 4 * k + r_, self.ACC(b, t) + r_)
                    k += 1
            if sp == 0: A.e("s_branch L_%s_spx", nm)
        A.label("L_%s_spx" % nm)
        srd(A, self.SRD_X, 40, 41, 2048 * 2048)
        srd(A, self.SRD_O, 56, 57, 2048 * 2048)
        A.e("v_and_b32 v48, 15, v1\nv_lshlrev_b32 v48, 11, v48")
        A.e("v_bfe_u32 v49, v1, 4, 1\nv_lshl_add_u32 v48, v49, 5, v48")
        A.e("v_lshrrev_b32 v49, 5, v1\nv_lshl_add_u32 v48, v49, 4, v48")
        A.e("s_lshl_b32 s%d, s4, 7\ns_lshl_b32 s%d, s3, 5\ns_add_u32 s%d, s%d, s%d\ns_lshl_b32 s%d, s%d, 11",
            self.S_T1, self.S_T2, self.S_T1, self.S_T1, self.S_T2, self.S_T1, self.S_T1)
        A.e("s_lshl_b32 s%d, s5, 8\ns_add_u32 s%d, s%d, s%d\ns_lshl_b32 s%d, s6, 7\ns_add_u32 s%d, s%d, s%d",
            self.S_T2, self.S_T1, self.S_T1, self.S_T2, self.S_T2, self.S_XOFF, self.S_T1, self.S_T2)
        A.e("s_add_u32 s%d, s%d, %d", self.S_WOFF, self.S_XOFF, 16 * 2048)
        for t in range(2):
            for pr in range(2):
                A.e("buffer_load_dwordx4 v[%d:%d], v48, s[%d:%d], s%d offen offset:%d", 112 + 8 * t + 4 * pr, 115 + 8 * t + 4 * pr, self.SRD_X, self.SRD_X + 3,
                    self.S_XOFF if t == 0 else self.S_WOFF, pr * 64)
        A.e("s_waitcnt vmcnt(4)")
        if self.stamps: A.e("s_memrealtime s[74:75]")
        A.e("s_barrier")
        A.e("s_cmp_eq_u32 s3, 0\ns_cbranch_scc0 L_%s_nopub", nm)
        A.e("s_lshl_b32 s%d, s%d, 7\ns_add_u32 s%d, s%d, %d", self.S_T2, self.S_T0, self.S_T2, self.S_T2, F_XCH)
        A.e("v_mov_b32 v50, 1\nv_mov_b32 v51, 0")
        A.e("s_mov_b64 s[72:73], exec\ns_mov_b64 exec, 1")
        A.e("buffer_atomic_add v50, v51, s[%d:%d], s%d offen sc1", F, F + 3, self.S_T2)
        poll(A, "L_%s_poll" % nm, F, self.S_T2, 2)
        A.e("s_mov_b64 exec, s[72:73]")
        A.label("L_%s_nopub" % nm)
        A.e("s_barrier")
        if self.stamps: A.e("s_memrealtime s[76:77]")
        A.e("s_xor_b32 s%d, s6, 1\ns_lshl_b32 s%d, s%d, 1\ns_add_u32 s%d, s%d, s%d\ns_lshl_b32 s%d, s%d, 2\ns_add_u32 s%d, s%d, s3\ns_lshl_b32 s%d, s%d, 13",
            self.S_T2, self.S_T1, self.S_T0, self.S_T1, self.S_T1, self.S_T2, self.S_T1, self.S_T1, self.S_T1, self.S_T1, self.S_T1, self.S_T1)
        A.e("s_add_u32 s%d, s%d, 4096", self.S_T2, self.S_T1)
        for k in range(8):
            A.e("buffer_load_dwordx4 v[%d:%d], v2, s[%d:%d], s%d offen offset:%d sc1", 128 + 4 * k, 131 + 4 * k, P, P + 3, self.S_T1 if k < 4 else self.S_T2, (k % 4) * 1024)
        A.e("s_waitcnt vmcnt(0)")
        for k in range(8):
            for r_ in (0, 2):
                A.e("v_pk_add_f32 v[%d:%d], v[%d:%d], v[%d:%d]", 16 + 4 * k + r_, 17 + 4 * k + r_, 16 + 4 * k + r_, 17 + 4 * k + r_, 128 + 4 * k + r_, 129 + 4 * k + r_)
        if self.stamps: A.e("s_memrealtime s[78:79]\ns_waitcnt lgkmcnt(0)")
        for t in range(2):
            for pr in range(2):
                b0 = 16 + 4 * ((2 * pr) * 2 + t); b1 = 16 + 4 * ((2 * pr + 1) * 2 + t)
                for r_ in range(4): A.e("v_permlane16_swap_b32 v%d, v%d", b0 + r_, b1 + r_)
        for t in range(2):
            for pr in range(2):
                b0 = 16 + 4 * ((2 * pr) * 2 + t); b1 = 16 + 4 * ((2 * pr + 1) * 2 + t); xr = 112 + 8 * t + 4 * pr
                o = 64 + 8 * t + 4 * pr
                for d in range(4):
                    src = b0 + 2 * d if d < 2 else b1 + 2 * (d - 2)
                    tt = 80 + 2 * d
                    A.e("v_lshlrev_b32 v%d, 16, v%d\nv_and_b32 v%d, 0xffff0000, v%d", tt, xr + d, tt + 1, xr + d)
                    A.e("v_pk_add_f32 v[%d:%d], v[%d:%d], v[%d:%d]", src, src + 1, src, src + 1, tt, tt + 1)
                    A.e("v_cvt_pk_bf16_f32 v%d, v%d, v%d", o + d, src, src + 1)
                A.e("buffer_store_dwordx4 v[%d:%d], v48, s[%d:%d], s%d offen offset:%d", o, o + 3, self.SRD_O, self.SRD_O + 3, self.S_XOFF if t == 0 else self.S_WOFF, pr * 64)

    def store_stamp(self, A):
        A.e("s_waitcnt vmcnt(0)\ns_memrealtime s[98:99]\ns_waitcnt lgkmcnt(0)")
        srd(A, 16, 60, 61, 0x100000, WS_STAMP + 0x10000)
        A.e("s_mul_i32 s64, s2, 4\ns_add_u32 s64, s64, s3\ns_lshl_b32 s64, s64, 5")
        A.e("v_mov_b32 v20, s88\nv_mov_b32 v21, s92\nv_mov_b32 v22, s94\nv_mov_b32 v23, s96\nv_mov_b32 v17, 0\nv_mov_b32 v24, s98")
        A.e("v_cmp_eq_u32 vcc, 0, v1\ns_and_saveexec_b64 s[90:91], vcc")
        A.e("buffer_store_dwordx4 v[20:23], v17, s[16:19], s64 offen\nbuffer_store_dword v24, v17, s[16:19], s64 offen offset:16")
        A.e("v_mov_b32 v28, s74\nv_mov_b32 v29, s74\nv_mov_b32 v30, s76\nv_mov_b32 v31, s78")
        A.e("s_add_u32 s64, s64, 0x8000\nbuffer_store_dwordx4 v[28:31], v17, s[16:19], s64 offen")
        A.e("s_mov_b64 exec, s[90:91]")

    def body(self):
        A = Asm(); nm = self.name
        A.e("s_cmp_ge_u32 s2, 256\ns_cbranch_scc1 L_%s_done" % nm)
        if self.stamps: A.e("s_memrealtime s[96:97]")
        A.e("s_load_dwordx16 s[40:55], s[0:1], 0")
        A.e("s_load_dwordx4 s[56:59], s[0:1], 64")
        A.e("s_load_dwordx2 s[60:61], s[0:1], 80")
        A.e("v_lshrrev_b32 v16, 6, v0\nv_and_b32 v1, 63, v0")
        A.e("v_readfirstlane_b32 s3, v16")
        A.e("s_waitcnt lgkmcnt(0)")
        self.setup(A)
        self.w_prologue(A)
        self.x_prologue(A)
        A.e("s_waitcnt vmcnt(%d)\ns_barrier", 2 * (self.XD - 1))
        self.loop(A)
        A.e("s_waitcnt vmcnt(0)")
        self.epilogue(A)
        if self.stamps: self.store_stamp(A)
        A.label("L_%s_done" % nm)
        A.e("s_endpgm")
        return fix_hazards(A.L)
```

```python
from asmlib import *
from g1 import srd
from g1c import WS_ACT2, WS_PART, WS_STAMP, ACT2_KS, merge_flat

WS_FLAG = 0x3000000
F_HEAD = 0
F_HRDY = 32 * 128
F_ORDY = 64 * 128
F_XCH = 96 * 128
N_FLAGS = 160
SPIN_MAX = 1 << 20

def poll(A, lab, srd_, soff, target, vtmp=52, vz=51, stmp=70, scnt=71):
    A.e("s_mov_b32 s%d, 0", scnt)
    A.label(lab)
    A.e("buffer_load_dword v%d, v%d, s[%d:%d], s%d offen sc1", vtmp, vz, srd_, srd_ + 3, soff)
    A.e("s_waitcnt vmcnt(0)")
    A.e("v_readfirstlane_b32 s%d, v%d", stmp, vtmp)
    A.e("s_add_u32 s%d, s%d, 1", scnt, scnt)
    A.e("s_cmp_ge_u32 s%d, %d\ns_cbranch_scc1 %s_ok", stmp, target, lab)
    A.e("s_cmp_ge_u32 s%d, %d\ns_cbranch_scc1 %s_ok", scnt, SPIN_MAX, lab)
    A.e("s_sleep 1\ns_branch %s", lab)
    A.label(lab + "_ok")

class G2C:
    def __init__(self, name='g2_kernel', stamps=False, XD=6, WL=3, fused=False):
        self.name = name; self.stamps = stamps; self.XD = XD; self.WL = WL; self.NB = WL + 1
        self.fused = fused
        self.NIT = 36 // XD
    STG = 16384
    HS = 28
    S_WAVE = 3; S_MT = 4; S_NT = 5; S_SP = 6
    SRD_X = 8; SRD_W = 12; SRD_O = 16; SRD_P = 20; SRD_F = 24
    S_XOFF = 28; S_WOFF = 29; S_WB = 30; S_RB = 31; S_RD = 32; S_CNT = 33; S_KP = 36; S_KN = 37
    S_XJ = 34; S_OF = 35
    S_T0 = 64; S_T1 = 65; S_T2 = 66; S_WL = 67; S_LD = 68; S_T3 = 69
    V_LANE = 1; V_L16 = 2; V_XO = [2, 3, 4, 5]; V_WO = 7; V_RA = [8, 9, 10, 11, 12, 13, 14, 15]; V_F = 6; V_Z = 16
    def ACC(self, b, t): return 128 + (b * 4 + t) * 4
    def WF(self, st, b): return 64 + st * 32 + 4 * b
    def XF(self, slot, t): return 256 + 160 + slot * 16 + 4 * t

    def x_loads(self, slot):
        sc = " sc1" if self.fused else ""
        return [["  buffer_load_dwordx4 %s, v%d, s[%d:%d], s%d offen%s" % (R(self.XF(slot, t), 4), self.V_XO[t], self.SRD_X, self.SRD_X + 3, self.S_XOFF, sc)] for t in range(4)] + \
               [["  s_add_u32 s%d, s%d, 1024" % (self.S_XOFF, self.S_XOFF)]]
    def w_dma(self, half):
        G = []
        for k in range(2):
            first = (half == 0 and k == 0)
            G.append(["  s_add_u32 m0, s%d, s%d" % (self.S_WB, self.S_LD)] if first else ["  s_add_u32 m0, m0, 4096"])
            G.append(["  buffer_load_dwordx4 v%d, s[%d:%d], s%d offen lds" % (self.V_WO, self.SRD_W, self.SRD_W + 3, self.S_WOFF)])
            G.append(["  s_add_u32 s%d, s%d, %d" % (self.S_WOFF, self.S_WOFF, 16 * 2048)])
        if half == 1:
            G.append(["  s_add_u32 s%d, s%d, %d" % (self.S_WB, self.S_WB, self.STG),
                      "  s_cmp_eq_u32 s%d, %d" % (self.S_WB, self.STG * self.NB),
                      "  s_cselect_b32 s%d, 0, s%d" % (self.S_WB, self.S_WB)])
        return G
    def w_reads(self, st, u):
        out = []
        for b in range(8):
            for t in range(2):
                out.append(["  ds_read_b64_tr_b16 %s, v%d offset:%d" % (vr(self.WF(st, b) + 2 * t, 2), self.V_RA[b], (32 * u + 16 * t) * 256)])
        return out
    def adv_read(self):
        out = [["  s_add_u32 s%d, s%d, %d" % (self.S_RB, self.S_RB, self.STG),
                "  s_cmp_eq_u32 s%d, %d" % (self.S_RB, self.STG * self.NB),
                "  s_cselect_b32 s%d, 0, s%d" % (self.S_RB, self.S_RB),
                "  s_cselect_b32 s%d, s%d, s%d" % (self.S_RD, self.S_KN, self.S_KP)]]
        out += [["  v_add_u32 v%d, s%d, v%d" % (r_, self.S_RD, r_)] for r_ in self.V_RA]
        return out
    def mfmas(self, st, slot):
        M = []
        for b in range(8):
            for t in (range(4) if b % 2 == 0 else range(3, -1, -1)):
                acc = vr(self.ACC(b, t), 4)
                M.append("  v_mfma_f32_16x16x32_bf16 %s, %s, %s, %s" % (acc, vr(self.WF(st, b), 4), R(self.XF(slot, t), 4), acc))
        return M

    def vm_tags(self, i):
        p = i % self.XD
        t = []
        if self.fused and p == 0: t.append(('F', i // self.XD))
        t += [('X', i + self.XD - 1)] * 4
        t += [('W', i // 2 + self.WL)] * 2
        return t
    def wait_count(self, i):
        q = [('X', k) for k in range(self.XD - 1) for _ in range(4)]
        for s_ in range(i): q += self.vm_tags(s_)
        need = [('X', i)]
        if i % 2 == 1: need.append(('W', (i + 1) // 2))
        if self.fused and i == self.step_xj(): need.append(('F', i // self.XD))
        n = 63
        for nd in need:
            idx = [k for k, t in enumerate(q) if t == nd]
            if idx: n = min(n, len(q) - 1 - idx[-1])
        return n
    def step_wsw(self): return 2 * (self.HS // 2 - self.WL)
    def step_xj(self): return self.HS - (self.XD - 1)
    def step_xend(self): return 36 - (self.XD - 1)
    def cnt_at(self, step): return self.NIT - step // self.XD

    def special(self, p):
        G = []
        if p == self.step_wsw() % self.XD:
            G.append(["  s_cmp_eq_u32 s%d, %d" % (self.S_CNT, self.cnt_at(self.step_wsw())),
                      "  s_cselect_b32 s%d, s46, s%d" % (self.SRD_W, self.SRD_W),
                      "  s_cselect_b32 s%d, s%d, s%d" % (self.SRD_W + 1, self.S_T2, self.SRD_W + 1),
                      "  s_cselect_b32 s%d, s%d, s%d" % (self.SRD_W + 2, self.S_WL, self.SRD_W + 2),
                      "  s_cselect_b32 s%d, s%d, s%d" % (self.S_WOFF, self.S_T1, self.S_WOFF)])
        if p == self.step_xj() % self.XD:
            G.append(["  s_cmp_eq_u32 s%d, %d" % (self.S_CNT, self.cnt_at(self.step_xj())),
                      "  s_cselect_b32 s%d, s%d, 0" % (self.S_T3, self.S_XJ),
                      "  s_add_u32 s%d, s%d, s%d" % (self.S_XOFF, self.S_XOFF, self.S_T3)])
        if p == self.step_xend() % self.XD:
            G.append(["  s_cmp_eq_u32 s%d, %d" % (self.S_CNT, self.cnt_at(self.step_xend())),
                      "  s_cselect_b32 s%d, 0x7f000000, s%d" % (self.S_XOFF, self.S_XOFF)])
        return G

    def step(self, A, p, nwait, extra, tagname):
        XD = self.XD
        st = p & 1
        if st == 1:
            A.e("s_waitcnt vmcnt(%d) lgkmcnt(0)\ns_barrier", nwait)
            rd = self.adv_read() + self.w_reads(0, 0)
        else:
            A.e("s_waitcnt vmcnt(%d) lgkmcnt(0)", nwait)
            rd = self.w_reads(1, 1)
        pre = []
        if self.fused and p == self.step_xj() % XD and tagname != 'peel':
            lab = "L_%s_%s_of" % (self.name, tagname)
            A.e("v_readfirstlane_b32 s70, v%d", self.V_F)
            A.e("s_cmp_eq_u32 s%d, %d\ns_cbranch_scc0 %s_ok", self.S_CNT, self.cnt_at(self.step_xj()), lab)
            A.e("s_cmp_ge_u32 s70, 8\ns_cbranch_scc1 %s_ok", lab)
            A.e("s_mov_b32 s71, 0")
            A.label(lab)
            A.e("buffer_load_dword v%d, v%d, s[%d:%d], s%d offen sc1\ns_waitcnt vmcnt(0)\nv_readfirstlane_b32 s70, v%d" % (self.V_F, self.V_Z, self.SRD_F, self.SRD_F + 3, self.S_OF, self.V_F))
            A.e("s_add_u32 s71, s71, 1\ns_cmp_ge_u32 s70, 8\ns_cbranch_scc1 %s_ok\ns_cmp_ge_u32 s71, %d\ns_cbranch_scc1 %s_ok\ns_sleep 1\ns_branch %s", lab, SPIN_MAX, lab, lab)
            A.label(lab + "_ok")
        if self.fused and p == 0:
            pre = [["  buffer_load_dword v%d, v%d, s[%d:%d], s%d offen sc1" % (self.V_F, self.V_Z, self.SRD_F, self.SRD_F + 3, self.S_OF)]]
        vm = pre + self.special(p) + self.x_loads((p + XD - 1) % XD) + self.w_dma(st)
        if st == 1: fill = rd[:9] + merge_flat(rd[9:], vm)
        else: fill = merge_flat(rd, vm)
        fill = [x for g_ in fill for x in g_] + extra
        A.ext(weave(self.mfmas(st, p % XD), fill, first=0, last=31))

    def setup(self, A):
        A.e("s_and_b32 s6, s2, 3")
        A.e("s_bfe_u32 s4, s2, 0x10002\ns_lshl_b32 s4, s4, 2\ns_bfe_u32 s7, s2, 0x20003\ns_add_u32 s4, s4, s7")
        A.e("s_lshr_b32 s5, s2, 5")
        A.e("v_lshlrev_b32 v2, 4, v1")
        for t in range(1, 4): A.e("v_add_u32 v%d, 0x%x, v2", self.V_XO[t], t * ACT2_KS * 1024)
        A.e("v_mov_b32 v%d, 0", self.V_Z)
        A.e("v_lshrrev_b32 v18, 4, v1")
        A.e("s_and_b32 s7, s3, 1\ns_lshl_b32 s7, s7, 2")
        A.e("v_add_u32 v17, s7, v18")
        A.e("v_bfe_u32 v19, v1, 1, 3")
        A.e("v_xor_b32 v19, v19, v17")
        A.e("v_and_b32 v20, 1, v1")
        A.e("v_lshl_add_u32 v19, v19, 1, v20")
        A.e("v_lshlrev_b32 v19, 4, v19")
        A.e("v_lshl_add_u32 v19, v18, 11, v19")
        A.e("s_lshl_b32 s7, s5, 8")
        A.e("v_add_u32 v%d, s7, v19", self.V_WO)
        A.e("v_lshrrev_b32 v17, 4, v1\nv_bfe_u32 v18, v1, 2, 2\nv_lshl_add_u32 v18, v17, 2, v18")
        A.e("v_and_b32 v19, 7, v18")
        A.e("v_lshlrev_b32 v18, 8, v18\nv_and_b32 v20, 3, v1\nv_lshl_add_u32 v18, v20, 3, v18")
        for b in range(8):
            A.e("v_xor_b32 v20, %d, v19\nv_lshl_add_u32 v%d, v20, 5, v18", b, self.V_RA[b])
        srd(A, self.SRD_X, 60, 61, 128 * ACT2_KS * 1024, WS_ACT2)
        srd(A, self.SRD_W, 54, 55, 3584 * 2048)
        srd(A, self.SRD_F, 60, 61, N_FLAGS * 128, WS_FLAG)
        A.e("s_lshl_b32 s7, s4, 4\ns_lshl_b32 s%d, s3, 2\ns_add_u32 s7, s7, s%d\ns_mul_i32 s7, s7, %d", self.S_T0, self.S_T0, ACT2_KS)
        A.e("s_mul_i32 s%d, s6, 28\ns_add_u32 s7, s7, s%d\ns_lshl_b32 s%d, s7, 10", self.S_T0, self.S_T0, self.S_XOFF)
        A.e("s_mul_i32 s%d, s6, 20\ns_sub_u32 s%d, 84, s%d\ns_lshl_b32 s%d, s%d, 10", self.S_T0, self.S_XJ, self.S_T0, self.S_XJ, self.S_XJ)
        A.e("s_lshl_b32 s%d, s3, 13", self.S_T0)
        A.e("s_mul_i32 s7, s6, %d\ns_add_u32 s%d, s7, s%d", 896 * 2048, self.S_WOFF, self.S_T0)
        A.e("s_mul_i32 s7, s6, %d\ns_add_u32 s%d, s7, s%d", 256 * 2048, self.S_T1, self.S_T0)
        A.e("s_and_b32 s%d, s47, 0xffff\ns_mov_b32 s%d, %d", self.S_T2, self.S_WL, 1024 * 2048)
        A.e("s_lshl_b32 s%d, s3, 10", self.S_LD)
        A.e("s_mov_b32 s%d, 0\ns_mov_b32 s%d, 0", self.S_WB, self.S_RB)
        A.e("s_mov_b32 s%d, %d\ns_mov_b32 s%d, 0x%x", self.S_KP, self.STG, self.S_KN, (-(self.NB - 1) * self.STG) & 0xffffffff)
        A.e("s_lshl_b32 s7, s4, 2\ns_add_u32 s7, s7, s6\ns_lshl_b32 s7, s7, 7\ns_add_u32 s%d, s7, %d", self.S_OF, F_ORDY)

    def w_prologue(self, A):
        for c in range(self.WL):
            for half in range(2):
                for g_ in self.w_dma(half): A.ext(g_)
    def x_prologue(self, A):
        for k in range(self.XD - 1):
            for g_ in self.x_loads(k): A.ext(g_)
        for k in range(128, 256): A.e("v_mov_b32 v%d, 0", k)

    def loop(self, A):
        nm = self.name; XD = self.XD
        for g_ in self.w_reads(0, 0): A.ext(g_)
        A.e("s_mov_b32 s%d, %d", self.S_CNT, self.NIT)
        if self.stamps: A.e("s_memtime s[86:87]\ns_memrealtime s[92:93]")
        dec = ["  s_sub_u32 s%d, s%d, 1" % (self.S_CNT, self.S_CNT), "  s_cmp_lg_u32 s%d, 0" % self.S_CNT]
        for p in range(XD):
            self.step(A, p, self.wait_count(p), dec if p == XD - 1 else [], 'peel')
        A.L.append(".p2align 6")
        A.label("L_%s_loop" % nm)
        for p in range(XD):
            n = min(self.wait_count(it * XD + p) for it in range(1, self.NIT))
            self.step(A, p, n, dec if p == XD - 1 else [], 'loop')
        A.e("s_cbranch_scc1 L_%s_loop", nm)
        if self.stamps: A.e("s_memtime s[88:89]\ns_memrealtime s[94:95]\ns_waitcnt lgkmcnt(0)\ns_sub_u32 s88, s88, s86")
        A.e("s_waitcnt lgkmcnt(0)\ns_nop 7")

    def epilogue(self, A):
        nm = self.name
        P = self.SRD_P; F = self.SRD_F
        srd(A, P, 60, 61, 64 * 16 * 4 * 4 * 1024, WS_PART)
        A.e("s_lshl_b32 s%d, s4, 3\ns_add_u32 s%d, s%d, s5", self.S_T0, self.S_T0, self.S_T0)
        A.e("s_lshl_b32 s%d, s%d, 4\ns_add_u32 s%d, s%d, s6\ns_lshl_b32 s%d, s%d, 2\ns_add_u32 s%d, s%d, s3\ns_lshl_b32 s%d, s%d, 12",
            self.S_T1, self.S_T0, self.S_T1, self.S_T1, self.S_T1, self.S_T1, self.S_T1, self.S_T1, self.S_T1, self.S_T1)
        for o in range(4):
            A.e("s_cmp_eq_u32 s6, %d\ns_cbranch_scc1 L_%s_own%d", o, nm, o)
            for t in range(4):
                b0, b1 = self.ACC(2 * o, t), self.ACC(2 * o + 1, t)
                A.e("v_cvt_pk_bf16_f32 v%d, v%d, v%d\nv_cvt_pk_bf16_f32 v%d, v%d, v%d\nv_cvt_pk_bf16_f32 v%d, v%d, v%d\nv_cvt_pk_bf16_f32 v%d, v%d, v%d",
                    b0, b0, b0 + 1, b0 + 1, b0 + 2, b0 + 3, b0 + 2, b1, b1 + 1, b0 + 3, b1 + 2, b1 + 3)
            for t in range(4):
                A.e("buffer_store_dwordx4 %s, v2, s[%d:%d], s%d offen offset:%d sc1", vr(self.ACC(2 * o, t), 4), P, P + 3, self.S_T1, t * 1024)
            A.e("s_branch L_%s_nxt%d", nm, o)
            A.label("L_%s_own%d" % (nm, o))
            for k in range(8):
                b, t = 2 * o + k // 4, k % 4
                for r_ in range(4): A.e("v_mov_b32 v%d, v%d", 20 + 4 * k + r_, self.ACC(b, t) + r_)
            A.label("L_%s_nxt%d" % (nm, o))
            if o < 3: A.e("s_add_u32 s%d, s%d, %d", self.S_T1, self.S_T1, 4 * 4 * 4096)
        srd(A, self.SRD_X, 40, 41, 2048 * 2048)
        srd(A, self.SRD_O, 56, 57, 2048 * 2048)
        A.e("v_and_b32 v56, 15, v1\nv_lshlrev_b32 v56, 11, v56")
        A.e("v_bfe_u32 v57, v1, 4, 1\nv_lshl_add_u32 v56, v57, 5, v56")
        A.e("v_lshrrev_b32 v57, 5, v1\nv_lshl_add_u32 v56, v57, 4, v56")
        A.e("s_lshl_b32 s%d, s4, 8\ns_lshl_b32 s%d, s3, 6\ns_add_u32 s%d, s%d, s%d\ns_lshl_b32 s%d, s%d, 11",
            self.S_T1, self.S_T2, self.S_T1, self.S_T1, self.S_T2, self.S_T1, self.S_T1)
        A.e("s_lshl_b32 s%d, s5, 8\ns_add_u32 s%d, s%d, s%d\ns_lshl_b32 s%d, s6, 6\ns_add_u32 s%d, s%d, s%d",
            self.S_T2, self.S_T1, self.S_T1, self.S_T2, self.S_T2, self.S_T1, self.S_T1, self.S_T2)
        A.e("s_mov_b32 s%d, s%d", self.S_XOFF, self.S_T1)
        for t in range(4):
            A.e("buffer_load_dwordx4 v[%d:%d], v56, s[%d:%d], s%d offen", 112 + 4 * t, 115 + 4 * t, self.SRD_X, self.SRD_X + 3, self.S_T1)
            A.e("s_add_u32 s%d, s%d, %d", self.S_T1, self.S_T1, 16 * 2048)
        A.e("s_waitcnt vmcnt(4)")
        if self.stamps: A.e("s_memrealtime s[74:75]")
        A.e("s_barrier")
        A.e("s_cmp_eq_u32 s3, 0\ns_cbranch_scc0 L_%s_nopub", nm)
        A.e("s_lshl_b32 s%d, s%d, 7\ns_add_u32 s%d, s%d, %d", self.S_T2, self.S_T0, self.S_T2, self.S_T2, F_XCH)
        A.e("v_mov_b32 v58, 1\nv_mov_b32 v59, 0")
        A.e("s_mov_b64 s[72:73], exec\ns_mov_b64 exec, 1")
        A.e("buffer_atomic_add v58, v59, s[%d:%d], s%d offen sc1", F, F + 3, self.S_T2)
        poll(A, "L_%s_poll" % nm, F, self.S_T2, 4, vtmp=60, vz=59)
        A.e("s_mov_b64 exec, s[72:73]")
        A.label("L_%s_nopub" % nm)
        A.e("s_barrier")
        if self.stamps: A.e("s_memrealtime s[76:77]")
        A.e("s_lshl_b32 s%d, s%d, 2\ns_add_u32 s%d, s%d, s6\ns_lshl_b32 s%d, s%d, 4\ns_add_u32 s%d, s%d, s3\ns_lshl_b32 s%d, s%d, 12",
            self.S_T1, self.S_T0, self.S_T1, self.S_T1, self.S_T1, self.S_T1, self.S_T1, self.S_T1, self.S_T1, self.S_T1)
        for k3 in range(3):
            A.e("s_add_u32 s%d, s6, %d\ns_and_b32 s%d, s%d, 3\ns_lshl_b32 s%d, s%d, 14\ns_add_u32 s%d, s%d, s%d",
                self.S_T2, k3 + 1, self.S_T2, self.S_T2, self.S_T2, self.S_T2, self.S_T2, self.S_T2, self.S_T1)
            for t in range(4):
                A.e("buffer_load_dwordx4 v[%d:%d], v2, s[%d:%d], s%d offen offset:%d sc1", 128 + 16 * k3 + 4 * t, 131 + 16 * k3 + 4 * t, P, P + 3, self.S_T2, t * 1024)
        for k3 in range(3):
            A.e("s_waitcnt vmcnt(%d)", 8 - 4 * k3)
            for t in range(4):
                src = 128 + 16 * k3 + 4 * t
                for d in range(4):
                    dst = (20 + 4 * t + 2 * d) if d < 2 else (36 + 4 * t + 2 * (d - 2))
                    tt = 192 + 8 * t + 2 * d
                    A.e("v_lshlrev_b32 v%d, 16, v%d\nv_and_b32 v%d, 0xffff0000, v%d", tt, src + d, tt + 1, src + d)
                    A.e("v_pk_add_f32 v[%d:%d], v[%d:%d], v[%d:%d]", dst, dst + 1, dst, dst + 1, tt, tt + 1)
        if self.stamps: A.e("s_memrealtime s[78:79]\ns_waitcnt lgkmcnt(0)")
        for t in range(4):
            b0 = 20 + 4 * t; b1 = 36 + 4 * t
            for r_ in range(4): A.e("v_permlane16_swap_b32 v%d, v%d", b0 + r_, b1 + r_)
        for t in range(4):
            b0 = 20 + 4 * t; b1 = 36 + 4 * t; xr = 112 + 4 * t
            for d in range(4):
                src = b0 + 2 * d if d < 2 else b1 + 2 * (d - 2)
                tt = 64 + 2 * d
                A.e("v_lshlrev_b32 v%d, 16, v%d\nv_and_b32 v%d, 0xffff0000, v%d", tt, xr + d, tt + 1, xr + d)
                A.e("v_pk_add_f32 v[%d:%d], v[%d:%d], v[%d:%d]", src, src + 1, src, src + 1, tt, tt + 1)
                A.e("v_cvt_pk_bf16_f32 v%d, v%d, v%d", 80 + 4 * t + d, src, src + 1)
            A.e("buffer_store_dwordx4 v[%d:%d], v56, s[%d:%d], s%d offen", 80 + 4 * t, 83 + 4 * t, self.SRD_O, self.SRD_O + 3, self.S_XOFF)
            A.e("s_add_u32 s%d, s%d, %d", self.S_XOFF, self.S_XOFF, 16 * 2048)

    def store_stamp(self, A):
        A.e("s_waitcnt vmcnt(0)\ns_memrealtime s[98:99]\ns_waitcnt lgkmcnt(0)")
        srd(A, 16, 60, 61, 0x100000, WS_STAMP + 0x10000)
        A.e("s_mul_i32 s64, s2, 4\ns_add_u32 s64, s64, s3\ns_lshl_b32 s64, s64, 5")
        A.e("v_mov_b32 v20, s88\nv_mov_b32 v21, s92\nv_mov_b32 v22, s94\nv_mov_b32 v23, s96\nv_mov_b32 v17, 0\nv_mov_b32 v24, s98")
        A.e("v_cmp_eq_u32 vcc, 0, v1\ns_and_saveexec_b64 s[90:91], vcc")
        A.e("buffer_store_dwordx4 v[20:23], v17, s[16:19], s64 offen\nbuffer_store_dword v24, v17, s[16:19], s64 offen offset:16")
        A.e("v_mov_b32 v28, s74\nv_mov_b32 v29, s74\nv_mov_b32 v30, s76\nv_mov_b32 v31, s78")
        A.e("s_add_u32 s64, s64, 0x8000\nbuffer_store_dwordx4 v[28:31], v17, s[16:19], s64 offen")
        A.e("s_mov_b64 exec, s[90:91]")

    def body(self):
        A = Asm(); nm = self.name
        A.e("s_cmp_ge_u32 s2, 256\ns_cbranch_scc1 L_%s_done" % nm)
        if self.stamps: A.e("s_memrealtime s[96:97]")
        A.e("s_load_dwordx16 s[40:55], s[0:1], 0")
        A.e("s_load_dwordx4 s[56:59], s[0:1], 64")
        A.e("s_load_dwordx2 s[60:61], s[0:1], 80")
        A.e("v_lshrrev_b32 v16, 6, v0\nv_and_b32 v1, 63, v0")
        A.e("v_readfirstlane_b32 s3, v16")
        A.e("s_waitcnt lgkmcnt(0)")
        self.setup(A)
        self.w_prologue(A)
        self.x_prologue(A)
        A.e("s_waitcnt vmcnt(%d)\ns_barrier", 4 * (self.XD - 1))
        self.loop(A)
        A.e("s_waitcnt vmcnt(0)")
        self.epilogue(A)
        if self.stamps: self.store_stamp(A)
        A.label("L_%s_done" % nm)
        A.e("s_endpgm")
        return fix_hazards(A.L)
```

```python
from asmlib import *
from g1 import srd
from g1c import WS_XN
WS_FLAG = 0x3000000
from g1c import WS_STAMP
def simple_stamp(A, plo, phi, off):
    A.e("s_waitcnt vmcnt(0)\ns_memrealtime s[98:99]\ns_waitcnt lgkmcnt(0)")
    srd(A, 16, plo, phi, 0x100000, WS_STAMP + off)
    A.e("s_lshl_b32 s64, s2, 2\ns_add_u32 s64, s64, s3\ns_lshl_b32 s64, s64, 5")
    A.e("v_mov_b32 v20, s96\nv_mov_b32 v21, s98\nv_mov_b32 v17, 0")
    A.e("v_cmp_eq_u32 vcc, 0, v1\ns_and_saveexec_b64 s[90:91], vcc")
    A.e("buffer_store_dwordx2 v[20:21], v17, s[16:19], s64 offen offset:12")
    A.e("s_mov_b64 exec, s[90:91]")

def ln_body(name='ln_kernel', stamps=False):
    A = Asm()
    A.e("s_cmp_ge_u32 s2, 128\ns_cbranch_scc1 L_%s_done" % name)
    if stamps: A.e("s_memrealtime s[96:97]")
    A.e("s_load_dwordx2 s[4:5], s[0:1], 0")
    A.e("s_load_dwordx2 s[6:7], s[0:1], 80")
    A.e("v_lshrrev_b32 v2, 6, v0")
    A.e("v_and_b32 v1, 63, v0")
    A.e("v_readfirstlane_b32 s3, v2")
    A.e("v_and_b32 v3, 15, v1")
    A.e("v_lshrrev_b32 v4, 4, v1")
    A.e("v_lshlrev_b32 v5, 11, v3")
    A.e("v_lshrrev_b32 v6, 1, v4\nv_lshl_add_u32 v5, v6, 6, v5")
    A.e("v_and_b32 v7, 1, v4\nv_lshl_add_u32 v5, v7, 4, v5")
    A.e("s_lshl_b32 s8, s2, 15\ns_lshl_b32 s9, s3, 9\ns_add_u32 s8, s8, s9")
    A.e("s_waitcnt lgkmcnt(0)")
    srd(A, 12, 4, 5, 2048 * 2048)
    srd(A, 16, 6, 7, 0x400000, WS_XN)
    for i in range(4):
        A.e("buffer_load_dwordx4 v[%d:%d], v5, s[12:15], s8 offen offset:%d", 16 + 8 * i, 19 + 8 * i, i * 128)
        A.e("buffer_load_dwordx4 v[%d:%d], v5, s[12:15], s8 offen offset:%d", 20 + 8 * i, 23 + 8 * i, i * 128 + 32)
    srd(A, 20, 6, 7, 192 * 128, WS_FLAG)
    A.e("s_cmp_ge_u32 s3, 2\ns_cbranch_scc1 L_%s_nz" % name)
    A.e("v_lshlrev_b32 v8, 2, v1\nv_mov_b32 v9, 0\ns_lshl_b32 s10, s3, 7\ns_add_u32 s10, s10, s2\ns_lshl_b32 s10, s10, 7")
    A.e("v_cmp_gt_u32 vcc, 32, v1\ns_and_saveexec_b64 s[24:25], vcc")
    A.e("buffer_store_dword v9, v8, s[20:23], s10 offen")
    A.e("s_mov_b64 exec, s[24:25]")
    A.label("L_%s_nz" % name)
    A.e("v_lshlrev_b32 v10, 10, v6")
    A.e("v_lshl_add_u32 v10, v7, 9, v10")
    A.e("v_lshl_add_u32 v10, v3, 4, v10")
    A.e("s_lshl_b32 s11, s2, 15\ns_lshl_b32 s9, s3, 13\ns_add_u32 s11, s11, s9")
    A.e("s_waitcnt vmcnt(0)" if True else "")
    for d in range(32):
        A.e("v_lshlrev_b32 v%d, 16, v%d", 64 + 2 * d, 16 + d)
        A.e("v_and_b32 v%d, 0xffff0000, v%d", 65 + 2 * d, 16 + d)
    A.e("v_pk_add_f32 v[48:49], v[64:65], v[66:67]")
    for d in range(2, 32): A.e("v_pk_add_f32 v[48:49], v[48:49], v[%d:%d]", 64 + 2 * d, 65 + 2 * d)
    A.e("v_add_f32 v48, v48, v49")
    def xreduce(reg, slot):
        A.e("v_mov_b32 v49, v%d\nv_permlane16_swap_b32 v%d, v49\nv_add_f32 v%d, v%d, v49" % (reg, reg, reg, reg))
        A.e("v_mov_b32 v49, v%d\nv_permlane32_swap_b32 v%d, v49\nv_add_f32 v%d, v%d, v49" % (reg, reg, reg, reg))
        A.e("s_lshl_b32 s9, s3, 6\nv_lshl_add_u32 v50, v3, 2, s9")
        A.e("ds_write_b32 v50, v%d offset:%d", reg, slot * 256)
        A.e("v_lshlrev_b32 v51, 2, v3")
        A.e("s_waitcnt lgkmcnt(0)\ns_barrier")
        for w in range(4): A.e("ds_read_b32 v%d, v51 offset:%d", 52 + w, slot * 256 + w * 64)
        A.e("s_waitcnt lgkmcnt(0)")
        A.e("v_add_f32 v52, v52, v53\nv_add_f32 v54, v54, v55\nv_add_f32 v%d, v52, v54" % reg)
    xreduce(48, 0)
    A.e("v_mul_f32 v48, 0x3a800000, v48")
    A.e("v_mov_b32 v49, v48")
    A.e("v_pk_add_f32 v[56:57], v[64:65], v[48:49] neg_lo:[0,1] neg_hi:[0,1]")
    A.e("v_pk_mul_f32 v[58:59], v[56:57], v[56:57]")
    for d in range(1, 32):
        A.e("v_pk_add_f32 v[56:57], v[%d:%d], v[48:49] neg_lo:[0,1] neg_hi:[0,1]", 64 + 2 * d, 65 + 2 * d)
        A.e("v_pk_fma_f32 v[58:59], v[56:57], v[56:57], v[58:59]")
    A.e("v_add_f32 v60, v58, v59")
    A.e("v_cvt_pk_bf16_f32 v61, v48, v48\nv_and_b32 v61, 0xffff0000, v61")
    xreduce(60, 1)
    A.e("v_mul_f32 v60, 0x3a800000, v60")
    A.e("v_cvt_pk_bf16_f32 v60, v60, v60\nv_and_b32 v60, 0xffff0000, v60")
    A.e("v_add_f32 v60, 0x3727c5ac, v60")
    A.e("v_cvt_pk_bf16_f32 v60, v60, v60\nv_and_b32 v60, 0xffff0000, v60")
    A.e("v_sqrt_f32 v60, v60")
    A.e("s_nop 0")
    A.e("v_cvt_pk_bf16_f32 v60, v60, v60\nv_and_b32 v60, 0xffff0000, v60")
    A.e("v_rcp_f32 v62, v60")
    A.e("s_nop 0")
    A.e("v_fma_f32 v63, -v60, v62, 1.0\nv_fma_f32 v62, v63, v62, v62")
    A.e("v_mov_b32 v63, v62\nv_mov_b32 v60, v61")
    for d in range(32):
        A.e("v_pk_add_f32 v[%d:%d], v[%d:%d], v[60:61] neg_lo:[0,1] neg_hi:[0,1]", 64 + 2 * d, 65 + 2 * d, 64 + 2 * d, 65 + 2 * d)
    for d in range(32):
        A.e("v_cvt_pk_bf16_f32 v%d, v%d, v%d", 16 + d, 64 + 2 * d, 65 + 2 * d)
    for d in range(32):
        A.e("v_lshlrev_b32 v%d, 16, v%d", 64 + 2 * d, 16 + d)
        A.e("v_and_b32 v%d, 0xffff0000, v%d", 65 + 2 * d, 16 + d)
    for d in range(32):
        A.e("v_pk_mul_f32 v[%d:%d], v[%d:%d], v[62:63]", 64 + 2 * d, 65 + 2 * d, 64 + 2 * d, 65 + 2 * d)
    for i in range(4):
        a0 = 8 * i; b0 = 8 * i + 4
        o = 128 + 8 * i
        for k, d in enumerate((a0, a0 + 1, b0, b0 + 1, a0 + 2, a0 + 3, b0 + 2, b0 + 3)):
            A.e("v_cvt_pk_bf16_f32 v%d, v%d, v%d", o + k, 64 + 2 * d, 65 + 2 * d)
        if i == 2: A.e("s_add_u32 s11, s11, 4096")
        A.e("buffer_store_dwordx4 v[%d:%d], v10, s[16:19], s11 offen offset:%d", o, o + 3, (i % 2) * 2048)
        A.e("buffer_store_dwordx4 v[%d:%d], v10, s[16:19], s11 offen offset:%d", o + 4, o + 7, (i % 2) * 2048 + 256)
    if stamps: simple_stamp(A, 6, 7, 0x20000)
    A.label("L_%s_done" % name)
    A.e("s_endpgm")
    return fix_hazards(A.L)
```

```python
from asmlib import *
from g1 import srd
from g1c import WS_ACT2, WS_PHIQ, WS_KVP, ACT2_KS

def o_body(name='o_kernel', stamps=False):
    A = Asm()
    A.e("s_cmp_ge_u32 s2, 256\ns_cbranch_scc1 L_%s_done" % name)
    if stamps: A.e("s_memrealtime s[96:97]")
    A.e("s_load_dwordx2 s[6:7], s[0:1], 80")
    A.e("v_lshrrev_b32 v2, 6, v0\nv_and_b32 v1, 63, v0")
    A.e("v_readfirstlane_b32 s3, v2")
    A.e("s_lshr_b32 s4, s2, 3\ns_and_b32 s4, s4, 7")
    A.e("s_and_b32 s5, s2, 7\ns_lshl_b32 s5, s5, 2\ns_lshr_b32 s8, s2, 6\ns_add_u32 s5, s5, s8")
    A.e("v_lshlrev_b32 v2, 4, v1")
    A.e("s_waitcnt lgkmcnt(0)")
    srd(A, 12, 6, 7, 32 * 8 * 12 * 1024, WS_KVP)
    srd(A, 16, 6, 7, 0x800000, WS_PHIQ)
    srd(A, 20, 6, 7, 128 * ACT2_KS * 1024, WS_ACT2)
    A.e("s_mul_i32 s8, s5, %d\ns_mul_i32 s9, s3, 3072\ns_add_u32 s8, s8, s9", 8 * 12 * 1024)
    for mm in range(8):
        for k in range(3):
            A.e("buffer_load_dwordx4 v[%d:%d], v2, s[12:15], s8 offen offset:%d", 32 + (mm * 3 + k) * 4, 35 + (mm * 3 + k) * 4, k * 1024)
        A.e("s_add_u32 s8, s8, %d", 12 * 1024)
    A.e("s_lshl_b32 s9, s5, 7\ns_lshl_b32 s10, s4, 4\ns_add_u32 s9, s9, s10\ns_lshl_b32 s10, s3, 2\ns_add_u32 s9, s9, s10\ns_lshl_b32 s9, s9, 11")
    for t in range(4):
        A.e("buffer_load_dwordx4 v[%d:%d], v2, s[16:19], s9 offen", 128 + 8 * t, 131 + 8 * t)
        A.e("buffer_load_dwordx4 v[%d:%d], v2, s[16:19], s9 offen offset:1024", 132 + 8 * t, 135 + 8 * t)
        A.e("s_add_u32 s9, s9, 2048")
    A.e("s_waitcnt vmcnt(8)")
    for mm in range(1, 8):
        for k in range(3):
            for r in (0, 2):
                A.e("v_pk_add_f32 v[%d:%d], v[%d:%d], v[%d:%d]", 32 + 4 * k + r, 33 + 4 * k + r, 32 + 4 * k + r, 33 + 4 * k + r,
                    32 + (mm * 3 + k) * 4 + r, 33 + (mm * 3 + k) * 4 + r)
    for k in range(3):
        A.e("v_cvt_pk_bf16_f32 v%d, v%d, v%d", 16 + 2 * k, 32 + 4 * k, 33 + 4 * k)
        A.e("v_cvt_pk_bf16_f32 v%d, v%d, v%d", 17 + 2 * k, 34 + 4 * k, 35 + 4 * k)
    A.e("v_lshlrev_b32 v3, 3, v1\ns_mul_i32 s9, s3, 1536\nv_add_u32 v4, s9, v3")
    for k in range(3): A.e("ds_write_b64 v4, v[%d:%d] offset:%d", 16 + 2 * k, 17 + 2 * k, k * 512)
    A.e("s_waitcnt lgkmcnt(0)\ns_barrier")
    def fr(sign, db): return 32 + 4 * (sign * 2 + db)
    for sign in range(2):
        for db in range(2):
            for fb in range(2):
                A.e("ds_read_b64 v[%d:%d], v3 offset:%d", fr(sign, db) + 2 * fb, fr(sign, db) + 2 * fb + 1, ((sign * 2 + fb) * 2 + db) * 512)
        for fb in range(2):
            A.e("ds_read_b64 v[%d:%d], v3 offset:%d", 48 + 4 * sign + 2 * fb, 49 + 4 * sign + 2 * fb, (8 + sign * 2 + fb) * 512)
    A.e("s_waitcnt vmcnt(0) lgkmcnt(0)")
    for t in range(4):
        P = 128 + 8 * t; D = 64 + 12 * t
        for db in range(2):
            A.e("v_mfma_f32_16x16x32_bf16 v[%d:%d], v[%d:%d], v[%d:%d], 0", D + 4 * db, D + 4 * db + 3, fr(0, db), fr(0, db) + 3, P, P + 3)
        A.e("v_mfma_f32_16x16x32_bf16 v[%d:%d], v[48:51], v[%d:%d], 0", D + 8, D + 11, P, P + 3)
    for t in range(4):
        P = 128 + 8 * t; D = 64 + 12 * t
        for db in range(2):
            A.e("v_mfma_f32_16x16x32_bf16 v[%d:%d], v[%d:%d], v[%d:%d], v[%d:%d]", D + 4 * db, D + 4 * db + 3, fr(1, db), fr(1, db) + 3, P + 4, P + 7, D + 4 * db, D + 4 * db + 3)
        A.e("v_mfma_f32_16x16x32_bf16 v[%d:%d], v[52:55], v[%d:%d], v[%d:%d]", D + 8, D + 11, P + 4, P + 7, D + 8, D + 11)
    A.e("s_lshl_b32 s9, s4, 4\ns_lshl_b32 s10, s3, 2\ns_add_u32 s9, s9, s10\ns_mul_i32 s9, s9, %d", ACT2_KS * 1024)
    A.e("s_add_u32 s10, s5, 112\ns_lshl_b32 s10, s10, 10\ns_add_u32 s9, s9, s10")
    for t in range(4):
        D = 64 + 12 * t
        A.e("v_add_f32 v%d, 0x358637bd, v%d", D + 8, D + 8)
    for t in range(4):
        D = 64 + 12 * t
        A.e("v_rcp_f32 v%d, v%d", D + 8, D + 8)
    for t in range(4):
        D = 64 + 12 * t
        for r in (0, 2, 4, 6):
            A.e("v_pk_mul_f32 v[%d:%d], v[%d:%d], v[%d:%d] op_sel_hi:[1,0]", D + r, D + r + 1, D + r, D + r + 1, D + 8, D + 9)
    for t in range(4):
        D = 64 + 12 * t
        for k in range(4): A.e("v_cvt_pk_bf16_f32 v%d, v%d, v%d", D + k, D + 2 * k, D + 2 * k + 1)
        A.e("buffer_store_dwordx4 v[%d:%d], v2, s[20:23], s9 offen", D, D + 3)
        A.e("s_add_u32 s9, s9, %d", ACT2_KS * 1024)
    if stamps:
        from kln import simple_stamp
        simple_stamp(A, 6, 7, 0x30000)
    A.label("L_%s_done" % name)
    A.e("s_endpgm")
    return fix_hazards(A.L)
```

```python
import sys; sys.path.insert(0, 'gen')
import g1 as G, g1d as GD, g1epi as E, kln, ko, kg2, kg2b, kg2c
def build(stamps=False, **kw):
    g = GD.G1D(stamps=stamps, epi=True)
    g2 = {'a': kg2.G2, 'b': kg2b.G2B, 'c': kg2c.G2C}[kw.get('g2v', 'c')](stamps=stamps, **kw.get('g2', {}))
    ks = [('ln_kernel', kln.ln_body(stamps=stamps), 160, 160, 128, 256, 512),
          (g.name, g.body(), 512, 256, 256, 256, E.L_XCH + 12288),
          ('o_kernel', ko.o_body(stamps=stamps), 160, 160, 256, 256, 6144),
          (g2.name, g2.body(), 512, 256, 256, 256, g2.STG * g2.NB)]
    return G.make_file(ks)
HEADER = open('parallel_sum__linear_kernel_hedgehog__glu_gated_reglu__prompt.s.ref').read().split('; Override launch')[0]
if __name__ == '__main__':
    txt = build(stamps=(len(sys.argv) > 2))
    open(sys.argv[1], 'w').write(HEADER + txt)
```

```python
from asmlib import *
from g1 import srd
from g1c import WS_ACT2, WS_PART, WS_STAMP, ACT2_KS, merge_flat

WS_FLAG = 0x3000000
F_HEAD = 0
F_HRDY = 32 * 128
F_ORDY = 64 * 128
F_XCH = 96 * 128
N_FLAGS = 160
SPIN_MAX = 1 << 20

def poll(A, lab, srd_, soff, target, vtmp=52, vz=51, stmp=70, scnt=71):
    A.e("s_mov_b32 s%d, 0", scnt)
    A.label(lab)
    A.e("buffer_load_dword v%d, v%d, s[%d:%d], s%d offen sc1", vtmp, vz, srd_, srd_ + 3, soff)
    A.e("s_waitcnt vmcnt(0)")
    A.e("v_readfirstlane_b32 s%d, v%d", stmp, vtmp)
    A.e("s_add_u32 s%d, s%d, 1", scnt, scnt)
    A.e("s_cmp_ge_u32 s%d, %d\ns_cbranch_scc1 %s_ok", stmp, target, lab)
    A.e("s_cmp_ge_u32 s%d, %d\ns_cbranch_scc1 %s_ok", scnt, SPIN_MAX, lab)
    A.e("s_sleep 1\ns_branch %s", lab)
    A.label(lab + "_ok")

class G2C:
    def __init__(self, name='g2_kernel', stamps=False, XD=6, WL=3, fused=False, xfmt='f32'):
        self.name = name; self.stamps = stamps; self.XD = XD; self.WL = WL; self.NB = WL + 1
        self.fused = fused; self.xfmt = xfmt
        self.NIT = 36 // XD
    STG = 16384
    HS = 28
    S_WAVE = 3; S_MT = 4; S_NT = 5; S_SP = 6
    SRD_X = 8; SRD_W = 12; SRD_O = 16; SRD_P = 20; SRD_F = 24
    S_XOFF = 28; S_WOFF = 29; S_WB = 30; S_RB = 31; S_RD = 32; S_CNT = 33; S_KP = 36; S_KN = 37
    S_XJ = 34; S_OF = 35
    S_T0 = 64; S_T1 = 65; S_T2 = 66; S_WL = 67; S_LD = 68; S_T3 = 69
    V_LANE = 1; V_L16 = 2; V_XO = [2, 3, 4, 5]; V_WO = 7; V_RA = [8, 9, 10, 11, 12, 13, 14, 15]; V_F = 6; V_Z = 16
    def ACC(self, b, t): return 128 + (b * 4 + t) * 4
    def WF(self, st, b): return 64 + st * 32 + 4 * b
    def XF(self, slot, t): return 256 + 160 + slot * 16 + 4 * t

    def x_loads(self, slot):
        sc = " sc1" if self.fused else ""
        return [["  buffer_load_dwordx4 %s, v%d, s[%d:%d], s%d offen%s" % (R(self.XF(slot, t), 4), self.V_XO[t], self.SRD_X, self.SRD_X + 3, self.S_XOFF, sc)] for t in range(4)] + \
               [["  s_add_u32 s%d, s%d, 1024" % (self.S_XOFF, self.S_XOFF)]]
    def w_dma(self, half):
        G = []
        for k in range(2):
            first = (half == 0 and k == 0)
            G.append(["  s_add_u32 m0, s%d, s%d" % (self.S_WB, self.S_LD)] if first else ["  s_add_u32 m0, m0, 4096"])
            G.append(["  buffer_load_dwordx4 v%d, s[%d:%d], s%d offen lds" % (self.V_WO, self.SRD_W, self.SRD_W + 3, self.S_WOFF)])
            G.append(["  s_add_u32 s%d, s%d, %d" % (self.S_WOFF, self.S_WOFF, 16 * 2048)])
        if half == 1:
            G.append(["  s_add_u32 s%d, s%d, %d" % (self.S_WB, self.S_WB, self.STG),
                      "  s_cmp_eq_u32 s%d, %d" % (self.S_WB, self.STG * self.NB),
                      "  s_cselect_b32 s%d, 0, s%d" % (self.S_WB, self.S_WB)])
        return G
    def w_reads(self, st, u):
        out = []
        for b in range(8):
            for t in range(2):
                out.append(["  ds_read_b64_tr_b16 %s, v%d offset:%d" % (vr(self.WF(st, b) + 2 * t, 2), self.V_RA[b], (32 * u + 16 * t) * 256)])
        return out
    def adv_read(self):
        out = [["  s_add_u32 s%d, s%d, %d" % (self.S_RB, self.S_RB, self.STG),
                "  s_cmp_eq_u32 s%d, %d" % (self.S_RB, self.STG * self.NB),
                "  s_cselect_b32 s%d, 0, s%d" % (self.S_RB, self.S_RB),
                "  s_cselect_b32 s%d, s%d, s%d" % (self.S_RD, self.S_KN, self.S_KP)]]
        out += [["  v_add_u32 v%d, s%d, v%d" % (r_, self.S_RD, r_)] for r_ in self.V_RA]
        return out
    def mfmas(self, st, slot):
        M = []
        for b in range(8):
            for t in (range(4) if b % 2 == 0 else range(3, -1, -1)):
                acc = vr(self.ACC(b, t), 4)
                M.append("  v_mfma_f32_16x16x32_bf16 %s, %s, %s, %s" % (acc, vr(self.WF(st, b), 4), R(self.XF(slot, t), 4), acc))
        return M

    def vm_tags(self, i):
        p = i % self.XD
        t = []
        if self.fused and p == 0: t.append(('F', i // self.XD))
        t += [('X', i + self.XD - 1)] * 4
        t += [('W', i // 2 + self.WL)] * 2
        return t
    def wait_count(self, i):
        q = [('X', k) for k in range(self.XD - 1) for _ in range(4)]
        for s_ in range(i): q += self.vm_tags(s_)
        need = [('X', i)]
        if i % 2 == 1: need.append(('W', (i + 1) // 2))
        if self.fused and i == self.step_xj(): need.append(('F', i // self.XD))
        n = 63
        for nd in need:
            idx = [k for k, t in enumerate(q) if t == nd]
            if idx: n = min(n, len(q) - 1 - idx[-1])
        return n
    def step_wsw(self): return 2 * (self.HS // 2 - self.WL)
    def step_xj(self): return self.HS - (self.XD - 1)
    def step_xend(self): return 36 - (self.XD - 1)
    def cnt_at(self, step): return self.NIT - step // self.XD

    def special(self, p):
        G = []
        if p == self.step_wsw() % self.XD:
            G.append(["  s_cmp_eq_u32 s%d, %d" % (self.S_CNT, self.cnt_at(self.step_wsw())),
                      "  s_cselect_b32 s%d, s46, s%d" % (self.SRD_W, self.SRD_W),
                      "  s_cselect_b32 s%d, s%d, s%d" % (self.SRD_W + 1, self.S_T2, self.SRD_W + 1),
                      "  s_cselect_b32 s%d, s%d, s%d" % (self.SRD_W + 2, self.S_WL, self.SRD_W + 2),
                      "  s_cselect_b32 s%d, s%d, s%d" % (self.S_WOFF, self.S_T1, self.S_WOFF)])
        if p == self.step_xj() % self.XD:
            G.append(["  s_cmp_eq_u32 s%d, %d" % (self.S_CNT, self.cnt_at(self.step_xj())),
                      "  s_cselect_b32 s%d, s%d, 0" % (self.S_T3, self.S_XJ),
                      "  s_add_u32 s%d, s%d, s%d" % (self.S_XOFF, self.S_XOFF, self.S_T3)])
        if p == self.step_xend() % self.XD:
            G.append(["  s_cmp_eq_u32 s%d, %d" % (self.S_CNT, self.cnt_at(self.step_xend())),
                      "  s_cselect_b32 s%d, 0x7f000000, s%d" % (self.S_XOFF, self.S_XOFF)])
        return G

    def step(self, A, p, nwait, extra, tagname):
        XD = self.XD
        st = p & 1
        if st == 1:
            A.e("s_waitcnt vmcnt(%d) lgkmcnt(0)\ns_barrier", nwait)
            rd = self.adv_read() + self.w_reads(0, 0)
        else:
            A.e("s_waitcnt vmcnt(%d) lgkmcnt(0)", nwait)
            rd = self.w_reads(1, 1)
        pre = []
        if self.fused and p == self.step_xj() % XD and tagname != 'peel':
            lab = "L_%s_%s_of" % (self.name, tagname)
            A.e("v_readfirstlane_b32 s70, v%d", self.V_F)
            A.e("s_cmp_eq_u32 s%d, %d\ns_cbranch_scc0 %s_ok", self.S_CNT, self.cnt_at(self.step_xj()), lab)
            A.e("s_cmp_ge_u32 s70, 8\ns_cbranch_scc1 %s_ok", lab)
            A.e("s_mov_b32 s71, 0")
            A.label(lab)
            A.e("buffer_load_dword v%d, v%d, s[%d:%d], s%d offen sc1\ns_waitcnt vmcnt(0)\nv_readfirstlane_b32 s70, v%d" % (self.V_F, self.V_Z, self.SRD_F, self.SRD_F + 3, self.S_OF, self.V_F))
            A.e("s_add_u32 s71, s71, 1\ns_cmp_ge_u32 s70, 8\ns_cbranch_scc1 %s_ok\ns_cmp_ge_u32 s71, %d\ns_cbranch_scc1 %s_ok\ns_sleep 1\ns_branch %s", lab, SPIN_MAX, lab, lab)
            A.label(lab + "_ok")
        if self.fused and p == 0:
            pre = [["  buffer_load_dword v%d, v%d, s[%d:%d], s%d offen sc1" % (self.V_F, self.V_Z, self.SRD_F, self.SRD_F + 3, self.S_OF)]]
        vm = pre + self.special(p) + self.x_loads((p + XD - 1) % XD) + self.w_dma(st)
        if st == 1: fill = rd[:9] + merge_flat(rd[9:], vm)
        else: fill = merge_flat(rd, vm)
        fill = [x for g_ in fill for x in g_] + extra
        A.ext(weave(self.mfmas(st, p % XD), fill, first=0, last=31))

    def setup(self, A):
        A.e("s_and_b32 s6, s2, 3")
        A.e("s_bfe_u32 s4, s2, 0x10002\ns_lshl_b32 s4, s4, 2\ns_bfe_u32 s7, s2, 0x20003\ns_add_u32 s4, s4, s7")
        A.e("s_lshr_b32 s5, s2, 5")
        A.e("v_lshlrev_b32 v2, 4, v1")
        for t in range(1, 4): A.e("v_add_u32 v%d, 0x%x, v2", self.V_XO[t], t * ACT2_KS * 1024)
        A.e("v_mov_b32 v%d, 0", self.V_Z)
        A.e("v_lshrrev_b32 v18, 4, v1")
        A.e("s_and_b32 s7, s3, 1\ns_lshl_b32 s7, s7, 2")
        A.e("v_add_u32 v17, s7, v18")
        A.e("v_bfe_u32 v19, v1, 1, 3")
        A.e("v_xor_b32 v19, v19, v17")
        A.e("v_and_b32 v20, 1, v1")
        A.e("v_lshl_add_u32 v19, v19, 1, v20")
        A.e("v_lshlrev_b32 v19, 4, v19")
        A.e("v_lshl_add_u32 v19, v18, 11, v19")
        A.e("s_lshl_b32 s7, s5, 8")
        A.e("v_add_u32 v%d, s7, v19", self.V_WO)
        A.e("v_lshrrev_b32 v17, 4, v1\nv_bfe_u32 v18, v1, 2, 2\nv_lshl_add_u32 v18, v17, 2, v18")
        A.e("v_and_b32 v19, 7, v18")
        A.e("v_lshlrev_b32 v18, 8, v18\nv_and_b32 v20, 3, v1\nv_lshl_add_u32 v18, v20, 3, v18")
        for b in range(8):
            A.e("v_xor_b32 v20, %d, v19\nv_lshl_add_u32 v%d, v20, 5, v18", b, self.V_RA[b])
        srd(A, self.SRD_X, 60, 61, 128 * ACT2_KS * 1024, WS_ACT2)
        srd(A, self.SRD_W, 54, 55, 3584 * 2048)
        srd(A, self.SRD_F, 60, 61, N_FLAGS * 128, WS_FLAG)
        A.e("s_lshl_b32 s7, s4, 4\ns_lshl_b32 s%d, s3, 2\ns_add_u32 s7, s7, s%d\ns_mul_i32 s7, s7, %d", self.S_T0, self.S_T0, ACT2_KS)
        A.e("s_mul_i32 s%d, s6, 28\ns_add_u32 s7, s7, s%d\ns_lshl_b32 s%d, s7, 10", self.S_T0, self.S_T0, self.S_XOFF)
        A.e("s_mul_i32 s%d, s6, 20\ns_sub_u32 s%d, 84, s%d\ns_lshl_b32 s%d, s%d, 10", self.S_T0, self.S_XJ, self.S_T0, self.S_XJ, self.S_XJ)
        A.e("s_lshl_b32 s%d, s3, 13", self.S_T0)
        A.e("s_mul_i32 s7, s6, %d\ns_add_u32 s%d, s7, s%d", 896 * 2048, self.S_WOFF, self.S_T0)
        A.e("s_mul_i32 s7, s6, %d\ns_add_u32 s%d, s7, s%d", 256 * 2048, self.S_T1, self.S_T0)
        A.e("s_and_b32 s%d, s47, 0xffff\ns_mov_b32 s%d, %d", self.S_T2, self.S_WL, 1024 * 2048)
        A.e("s_lshl_b32 s%d, s3, 10", self.S_LD)
        A.e("s_mov_b32 s%d, 0\ns_mov_b32 s%d, 0", self.S_WB, self.S_RB)
        A.e("s_mov_b32 s%d, %d\ns_mov_b32 s%d, 0x%x", self.S_KP, self.STG, self.S_KN, (-(self.NB - 1) * self.STG) & 0xffffffff)
        A.e("s_lshl_b32 s7, s4, 2\ns_add_u32 s7, s7, s6\ns_lshl_b32 s7, s7, 7\ns_add_u32 s%d, s7, %d", self.S_OF, F_ORDY)

    def w_prologue(self, A):
        for c in range(self.WL):
            for half in range(2):
                for g_ in self.w_dma(half): A.ext(g_)
    def x_prologue(self, A):
        for k in range(self.XD - 1):
            for g_ in self.x_loads(k): A.ext(g_)
        for k in range(128, 256): A.e("v_mov_b32 v%d, 0", k)

    def loop(self, A):
        nm = self.name; XD = self.XD
        for g_ in self.w_reads(0, 0): A.ext(g_)
        A.e("s_mov_b32 s%d, %d", self.S_CNT, self.NIT)
        if self.stamps: A.e("s_memtime s[86:87]\ns_memrealtime s[92:93]")
        dec = ["  s_sub_u32 s%d, s%d, 1" % (self.S_CNT, self.S_CNT), "  s_cmp_lg_u32 s%d, 0" % self.S_CNT]
        for p in range(XD):
            self.step(A, p, self.wait_count(p), dec if p == XD - 1 else [], 'peel')
        A.L.append(".p2align 6")
        A.label("L_%s_loop" % nm)
        for p in range(XD):
            n = min(self.wait_count(it * XD + p) for it in range(1, self.NIT))
            self.step(A, p, n, dec if p == XD - 1 else [], 'loop')
        A.e("s_cbranch_scc1 L_%s_loop", nm)
        if self.stamps: A.e("s_memtime s[88:89]\ns_memrealtime s[94:95]\ns_waitcnt lgkmcnt(0)\ns_sub_u32 s88, s88, s86")
        A.e("s_waitcnt lgkmcnt(0)\ns_nop 7")

    def epilogue(self, A):
        nm = self.name
        P = self.SRD_P; F = self.SRD_F
        f32 = self.xfmt == 'f32'
        SH = 13 if f32 else 12
        NL = 8 if f32 else 4
        srd(A, P, 60, 61, 64 * 16 * 4 << SH, WS_PART)
        A.e("s_lshl_b32 s%d, s4, 3\ns_add_u32 s%d, s%d, s5", self.S_T0, self.S_T0, self.S_T0)
        A.e("s_lshl_b32 s%d, s%d, 4\ns_add_u32 s%d, s%d, s6\ns_lshl_b32 s%d, s%d, 2\ns_add_u32 s%d, s%d, s3\ns_lshl_b32 s%d, s%d, %d",
            self.S_T1, self.S_T0, self.S_T1, self.S_T1, self.S_T1, self.S_T1, self.S_T1, self.S_T1, self.S_T1, self.S_T1, SH)
        for o in range(4):
            A.e("s_cmp_eq_u32 s6, %d\ns_cbranch_scc1 L_%s_own%d", o, nm, o)
            if f32:
                A.e("s_add_u32 s%d, s%d, 4096", self.S_T2, self.S_T1)
                for k in range(8):
                    b, t = 2 * o + k // 4, k % 4
                    A.e("buffer_store_dwordx4 %s, v2, s[%d:%d], s%d offen offset:%d sc1", vr(self.ACC(b, t), 4), P, P + 3, self.S_T1 if k < 4 else self.S_T2, (k % 4) * 1024)
            else:
                for t in range(4):
                    b0, b1 = self.ACC(2 * o, t), self.ACC(2 * o + 1, t)
                    A.e("v_cvt_pk_bf16_f32 v%d, v%d, v%d\nv_cvt_pk_bf16_f32 v%d, v%d, v%d\nv_cvt_pk_bf16_f32 v%d, v%d, v%d\nv_cvt_pk_bf16_f32 v%d, v%d, v%d",
                        b0, b0, b0 + 1, b0 + 1, b0 + 2, b0 + 3, b0 + 2, b1, b1 + 1, b0 + 3, b1 + 2, b1 + 3)
                for t in range(4):
                    A.e("buffer_store_dwordx4 %s, v2, s[%d:%d], s%d offen offset:%d sc1", vr(self.ACC(2 * o, t), 4), P, P + 3, self.S_T1, t * 1024)
            A.e("s_branch L_%s_nxt%d", nm, o)
            A.label("L_%s_own%d" % (nm, o))
            for k in range(8):
                b, t = 2 * o + k // 4, k % 4
                for r_ in range(4): A.e("v_mov_b32 v%d, v%d", 20 + 4 * k + r_, self.ACC(b, t) + r_)
            A.label("L_%s_nxt%d" % (nm, o))
            if o < 3: A.e("s_add_u32 s%d, s%d, %d", self.S_T1, self.S_T1, 16 << SH)
        srd(A, self.SRD_X, 40, 41, 2048 * 2048)
        srd(A, self.SRD_O, 56, 57, 2048 * 2048)
        A.e("v_and_b32 v56, 15, v1\nv_lshlrev_b32 v56, 11, v56")
        A.e("v_bfe_u32 v57, v1, 4, 1\nv_lshl_add_u32 v56, v57, 5, v56")
        A.e("v_lshrrev_b32 v57, 5, v1\nv_lshl_add_u32 v56, v57, 4, v56")
        A.e("s_lshl_b32 s%d, s4, 8\ns_lshl_b32 s%d, s3, 6\ns_add_u32 s%d, s%d, s%d\ns_lshl_b32 s%d, s%d, 11",
            self.S_T1, self.S_T2, self.S_T1, self.S_T1, self.S_T2, self.S_T1, self.S_T1)
        A.e("s_lshl_b32 s%d, s5, 8\ns_add_u32 s%d, s%d, s%d\ns_lshl_b32 s%d, s6, 6\ns_add_u32 s%d, s%d, s%d",
            self.S_T2, self.S_T1, self.S_T1, self.S_T2, self.S_T2, self.S_T1, self.S_T1, self.S_T2)
        A.e("s_mov_b32 s%d, s%d", self.S_XOFF, self.S_T1)
        for t in range(4):
            A.e("buffer_load_dwordx4 v[%d:%d], v56, s[%d:%d], s%d offen", 112 + 4 * t, 115 + 4 * t, self.SRD_X, self.SRD_X + 3, self.S_T1)
            A.e("s_add_u32 s%d, s%d, %d", self.S_T1, self.S_T1, 16 * 2048)
        A.e("s_waitcnt vmcnt(4)")
        if self.stamps: A.e("s_memrealtime s[74:75]")
        A.e("s_barrier")
        A.e("s_cmp_eq_u32 s3, 0\ns_cbranch_scc0 L_%s_nopub", nm)
        A.e("s_lshl_b32 s%d, s%d, 7\ns_add_u32 s%d, s%d, %d", self.S_T2, self.S_T0, self.S_T2, self.S_T2, F_XCH)
        A.e("v_mov_b32 v58, 1\nv_mov_b32 v59, 0")
        A.e("s_mov_b64 s[72:73], exec\ns_mov_b64 exec, 1")
        A.e("buffer_atomic_add v58, v59, s[%d:%d], s%d offen sc1", F, F + 3, self.S_T2)
        poll(A, "L_%s_poll" % nm, F, self.S_T2, 4, vtmp=60, vz=59)
        A.e("s_mov_b64 exec, s[72:73]")
        A.label("L_%s_nopub" % nm)
        A.e("s_barrier")
        if self.stamps: A.e("s_memrealtime s[76:77]")
        A.e("s_lshl_b32 s%d, s%d, 2\ns_add_u32 s%d, s%d, s6\ns_lshl_b32 s%d, s%d, 4\ns_add_u32 s%d, s%d, s3\ns_lshl_b32 s%d, s%d, %d",
            self.S_T1, self.S_T0, self.S_T1, self.S_T1, self.S_T1, self.S_T1, self.S_T1, self.S_T1, self.S_T1, self.S_T1, SH)
        for k3 in range(3):
            A.e("s_add_u32 s%d, s6, %d\ns_and_b32 s%d, s%d, 3\ns_lshl_b32 s%d, s%d, %d\ns_add_u32 s%d, s%d, s%d",
                self.S_T2, k3 + 1, self.S_T2, self.S_T2, self.S_T2, self.S_T2, SH + 2, self.S_T2, self.S_T2, self.S_T1)
            for k in range(NL):
                if k == 4: A.e("s_add_u32 s%d, s%d, 4096", self.S_T2, self.S_T2)
                d = 128 + 4 * NL * k3 + 4 * k
                A.e("buffer_load_dwordx4 v[%d:%d], v2, s[%d:%d], s%d offen offset:%d sc1", d, d + 3, P, P + 3, self.S_T2, (k % 4) * 1024)
        for k3 in range(3):
            A.e("s_waitcnt vmcnt(%d)", NL * (2 - k3))
            if f32:
                for k in range(8):
                    for r_ in (0, 2):
                        sr_ = 128 + 32 * k3 + 4 * k + r_
                        A.e("v_pk_add_f32 v[%d:%d], v[%d:%d], v[%d:%d]", 20 + 4 * k + r_, 21 + 4 * k + r_, 20 + 4 * k + r_, 21 + 4 * k + r_, sr_, sr_ + 1)
            else:
                for t in range(4):
                    src = 128 + 16 * k3 + 4 * t
                    for d in range(4):
                        dst = (20 + 4 * t + 2 * d) if d < 2 else (36 + 4 * t + 2 * (d - 2))
                        tt = 224 + 8 * t + 2 * d
                        A.e("v_lshlrev_b32 v%d, 16, v%d\nv_and_b32 v%d, 0xffff0000, v%d", tt, src + d, tt + 1, src + d)
                        A.e("v_pk_add_f32 v[%d:%d], v[%d:%d], v[%d:%d]", dst, dst + 1, dst, dst + 1, tt, tt + 1)
        if self.stamps: A.e("s_memrealtime s[78:79]\ns_waitcnt lgkmcnt(0)")
        for t in range(4):
            b0 = 20 + 4 * t; b1 = 36 + 4 * t
            for r_ in range(4): A.e("v_permlane16_swap_b32 v%d, v%d", b0 + r_, b1 + r_)
        for t in range(4):
            b0 = 20 + 4 * t; b1 = 36 + 4 * t; xr = 112 + 4 * t
            for d in range(4):
                src = b0 + 2 * d if d < 2 else b1 + 2 * (d - 2)
                tt = 64 + 2 * d
                A.e("v_lshlrev_b32 v%d, 16, v%d\nv_and_b32 v%d, 0xffff0000, v%d", tt, xr + d, tt + 1, xr + d)
                A.e("v_pk_add_f32 v[%d:%d], v[%d:%d], v[%d:%d]", src, src + 1, src, src + 1, tt, tt + 1)
                A.e("v_cvt_pk_bf16_f32 v%d, v%d, v%d", 80 + 4 * t + d, src, src + 1)
            A.e("buffer_store_dwordx4 v[%d:%d], v56, s[%d:%d], s%d offen", 80 + 4 * t, 83 + 4 * t, self.SRD_O, self.SRD_O + 3, self.S_XOFF)
            A.e("s_add_u32 s%d, s%d, %d", self.S_XOFF, self.S_XOFF, 16 * 2048)

    def store_stamp(self, A):
        A.e("s_waitcnt vmcnt(0)\ns_memrealtime s[98:99]\ns_waitcnt lgkmcnt(0)")
        srd(A, 16, 60, 61, 0x100000, WS_STAMP + 0x10000)
        A.e("s_mul_i32 s64, s2, 4\ns_add_u32 s64, s64, s3\ns_lshl_b32 s64, s64, 5")
        A.e("v_mov_b32 v20, s88\nv_mov_b32 v21, s92\nv_mov_b32 v22, s94\nv_mov_b32 v23, s96\nv_mov_b32 v17, 0\nv_mov_b32 v24, s98")
        A.e("v_cmp_eq_u32 vcc, 0, v1\ns_and_saveexec_b64 s[90:91], vcc")
        A.e("buffer_store_dwordx4 v[20:23], v17, s[16:19], s64 offen\nbuffer_store_dword v24, v17, s[16:19], s64 offen offset:16")
        A.e("v_mov_b32 v28, s74\nv_mov_b32 v29, s74\nv_mov_b32 v30, s76\nv_mov_b32 v31, s78")
        A.e("s_add_u32 s64, s64, 0x8000\nbuffer_store_dwordx4 v[28:31], v17, s[16:19], s64 offen")
        A.e("s_mov_b64 exec, s[90:91]")

    def body(self):
        A = Asm(); nm = self.name
        A.e("s_cmp_ge_u32 s2, 256\ns_cbranch_scc1 L_%s_done" % nm)
        if self.stamps: A.e("s_memrealtime s[96:97]")
        A.e("s_load_dwordx16 s[40:55], s[0:1], 0")
        A.e("s_load_dwordx4 s[56:59], s[0:1], 64")
        A.e("s_load_dwordx2 s[60:61], s[0:1], 80")
        A.e("v_lshrrev_b32 v16, 6, v0\nv_and_b32 v1, 63, v0")
        A.e("v_readfirstlane_b32 s3, v16")
        A.e("s_waitcnt lgkmcnt(0)")
        self.setup(A)
        self.w_prologue(A)
        self.x_prologue(A)
        A.e("s_waitcnt vmcnt(%d)\ns_barrier", 4 * (self.XD - 1))
        self.loop(A)
        A.e("s_waitcnt vmcnt(0)")
        self.epilogue(A)
        if self.stamps: self.store_stamp(A)
        A.label("L_%s_done" % nm)
        A.e("s_endpgm")
        return fix_hazards(A.L)
```

```python
from asmlib import *
from g1 import srd, make_file
from g1c import *
from g1d import G1D, flat
import g1epi as E
from g1epi import (S_CP, S_CN, LOG2E_BITS, A_WPHI, A_ID, A_ONE, A_KV, L_XCH, gu_block, zipstreams, softmax_stream, pack4, mfma)
from kg2c import G2C, poll, WS_FLAG, F_HEAD, F_HRDY, F_ORDY, F_XCH, N_FLAGS, SPIN_MAX

class Fused(G1D):
    def __init__(self, name='parallel_sum__linear_kernel_hedgehog__glu_gated_reglu__prompt_kernel', stamps=False, g2kw=None, upto='all'):
        super().__init__(stamps=stamps, name=name)
        self.g2 = G2C(name=name + '_g2', stamps=stamps, fused=True, **(g2kw or {}))
        self.upto = upto
    def stamp(self, A, k):
        if self.stamps: A.e("s_memrealtime s[%d:%d]\ns_waitcnt lgkmcnt(0)\ns_mov_b32 s%d, s100" % (100, 101, k))

    def ln_loads(self, A):
        L = self.V_LANE
        srd(A, 24, 40, 41, 2048 * 2048)
        A.e("v_and_b32 v40, 7, v%d\nv_lshrrev_b32 v41, 3, v%d", L, L)
        A.e("v_lshlrev_b32 v42, 11, v40")
        A.e("v_lshrrev_b32 v43, 1, v41\nv_lshl_add_u32 v42, v43, 6, v42")
        A.e("v_and_b32 v44, 1, v41\nv_lshl_add_u32 v42, v44, 4, v42")
        A.e("s_lshl_b32 s%d, s4, 8\ns_lshl_b32 s%d, s5, 3\ns_add_u32 s%d, s%d, s%d\ns_lshl_b32 s%d, s%d, 11", self.S_T0, self.S_T1, self.S_T0, self.S_T0, self.S_T1, self.S_T0, self.S_T0)
        A.e("s_lshl_b32 s%d, s3, 9\ns_add_u32 s%d, s%d, s%d", self.S_T1, self.S_T0, self.S_T0, self.S_T1)
        for k, off in enumerate((0, 32, 256, 288)):
            A.e("buffer_load_dwordx4 v[%d:%d], v42, s[24:27], s%d offen offset:%d", 80 + 4 * k, 83 + 4 * k, self.S_T0, off)
        lab = "L_%s_nz" % self.name
        srd(A, 86 - 2, 60, 61, N_FLAGS * 128, WS_FLAG) if False else None
        srd(A, 20, 60, 61, N_FLAGS * 128, WS_FLAG)
        A.e("s_cmp_eq_u32 s3, 0\ns_cbranch_scc0 %s", lab)
        A.e("v_lshlrev_b32 v45, 2, v%d\nv_mov_b32 v46, 0\ns_lshl_b32 s%d, s2, 7", L, self.S_T1)
        A.e("v_cmp_gt_u32 vcc, 32, v%d\ns_and_saveexec_b64 s[90:91], vcc", L)
        A.e("buffer_store_dword v46, v45, s[20:23], s%d offen sc1", self.S_T1)
        A.e("s_mov_b64 exec, s[90:91]")
        A.label(lab)
        A.e("v_lshlrev_b32 v47, 10, v43\nv_lshl_add_u32 v47, v44, 9, v47\nv_lshl_add_u32 v47, v40, 4, v47")

    def ln_compute(self, A, nvm_after):
        A.e("s_waitcnt vmcnt(%d)", nvm_after)
        X = 96
        for d in range(16):
            A.e("v_lshlrev_b32 v%d, 16, v%d\nv_and_b32 v%d, 0xffff0000, v%d", X + 2 * d, 80 + d, X + 2 * d + 1, 80 + d)
        A.e("v_pk_add_f32 v[128:129], v[96:97], v[98:99]")
        for d in range(2, 16): A.e("v_pk_add_f32 v[128:129], v[128:129], v[%d:%d]", X + 2 * d, X + 2 * d + 1)
        A.e("v_add_f32 v128, v128, v129")
        def xred(reg, slot):
            A.e("v_add_f32_dpp v%d, v%d, v%d row_ror:8 row_mask:0xf bank_mask:0xf" % (reg, reg, reg))
            A.e("v_mov_b32 v129, v%d\nv_permlane16_swap_b32 v%d, v129\nv_add_f32 v%d, v%d, v129" % (reg, reg, reg, reg))
            A.e("v_mov_b32 v129, v%d\nv_permlane32_swap_b32 v%d, v129\nv_add_f32 v%d, v%d, v129" % (reg, reg, reg, reg))
            A.e("s_lshl_b32 s%d, s3, 5\nv_lshl_add_u32 v130, v40, 2, s%d\nv_add_u32 v130, %d, v130" % (self.S_T1, self.S_T1, L_XCH + slot * 128))
            A.e("ds_write_b32 v130, v%d" % reg)
            A.e("v_lshlrev_b32 v131, 2, v40\nv_add_u32 v131, %d, v131" % (L_XCH + slot * 128))
            A.e("s_waitcnt lgkmcnt(0)\ns_barrier")
            for w in range(4): A.e("ds_read_b32 v%d, v131 offset:%d", 132 + w, w * 32)
            A.e("s_waitcnt lgkmcnt(0)")
            A.e("v_add_f32 v132, v132, v133\nv_add_f32 v134, v134, v135\nv_add_f32 v%d, v132, v134" % reg)
        xred(128, 0)
        A.e("v_mul_f32 v128, 0x3a800000, v128\nv_mov_b32 v129, v128")
        A.e("v_pk_add_f32 v[136:137], v[96:97], v[128:129] neg_lo:[0,1] neg_hi:[0,1]\nv_pk_mul_f32 v[138:139], v[136:137], v[136:137]")
        for d in range(1, 16):
            A.e("v_pk_add_f32 v[136:137], v[%d:%d], v[128:129] neg_lo:[0,1] neg_hi:[0,1]", X + 2 * d, X + 2 * d + 1)
            A.e("v_pk_fma_f32 v[138:139], v[136:137], v[136:137], v[138:139]")
        A.e("v_add_f32 v140, v138, v139")
        A.e("v_cvt_pk_bf16_f32 v141, v128, v128\nv_and_b32 v141, 0xffff0000, v141")
        xred(140, 1)
        A.e("v_mul_f32 v140, 0x3a800000, v140")
        A.e("v_cvt_pk_bf16_f32 v140, v140, v140\nv_and_b32 v140, 0xffff0000, v140")
        A.e("v_add_f32 v140, 0x3727c5ac, v140")
        A.e("v_cvt_pk_bf16_f32 v140, v140, v140\nv_and_b32 v140, 0xffff0000, v140")
        A.e("v_sqrt_f32 v140, v140")
        A.e("v_cvt_pk_bf16_f32 v140, v140, v140\nv_and_b32 v140, 0xffff0000, v140")
        A.e("v_rcp_f32 v142, v140")
        A.e("v_fma_f32 v143, -v140, v142, 1.0\nv_fma_f32 v142, v143, v142, v142")
        A.e("v_mov_b32 v143, v142\nv_mov_b32 v140, v141")
        for d in range(16): A.e("v_pk_add_f32 v[%d:%d], v[%d:%d], v[140:141] neg_lo:[0,1] neg_hi:[0,1]", X + 2 * d, X + 2 * d + 1, X + 2 * d, X + 2 * d + 1)
        for d in range(16): A.e("v_cvt_pk_bf16_f32 v%d, v%d, v%d", 80 + d, X + 2 * d, X + 2 * d + 1)
        for d in range(16): A.e("v_lshlrev_b32 v%d, 16, v%d\nv_and_b32 v%d, 0xffff0000, v%d", X + 2 * d, 80 + d, X + 2 * d + 1, 80 + d)
        for d in range(16): A.e("v_pk_mul_f32 v[%d:%d], v[%d:%d], v[142:143]", X + 2 * d, X + 2 * d + 1, X + 2 * d, X + 2 * d + 1)
        A.e("s_lshl_b32 s%d, s4, 4\ns_lshr_b32 s%d, s5, 1\ns_add_u32 s%d, s%d, s%d\ns_lshl_b32 s%d, s%d, 15", self.S_T0, self.S_T1, self.S_T0, self.S_T0, self.S_T1, self.S_T0, self.S_T0)
        A.e("s_lshl_b32 s%d, s3, 13\ns_add_u32 s%d, s%d, s%d\ns_lshl_b32 s%d, s7, 7\ns_add_u32 s%d, s%d, s%d", self.S_T1, self.S_T0, self.S_T0, self.S_T1, self.S_T1, self.S_T0, self.S_T0, self.S_T1)
        for u in range(2):
            a0 = 8 * u; b0 = 8 * u + 4; o = 144 + 8 * u
            for k, d in enumerate((a0, a0 + 1, b0, b0 + 1, a0 + 2, a0 + 3, b0 + 2, b0 + 3)):
                A.e("v_cvt_pk_bf16_f32 v%d, v%d, v%d", o + k, X + 2 * d, X + 2 * d + 1)
            if u == 1: A.e("s_add_u32 s%d, s%d, 4096", self.S_T0, self.S_T0)
            A.e("buffer_store_dwordx4 v[%d:%d], v47, s[%d:%d], s%d offen sc1", o, o + 3, self.SRD_ACT, self.SRD_ACT + 3, self.S_T0)
            A.e("buffer_store_dwordx4 v[%d:%d], v47, s[%d:%d], s%d offen offset:256 sc1", o + 4, o + 7, self.SRD_ACT, self.SRD_ACT + 3, self.S_T0)

    def dma_flat(self):
        G = super().dma_flat()
        out = []
        for g_ in G:
            out.append([x.replace(" offen lds", " offen sc1 lds") if ("s[%d:%d]" % (self.SRD_ACT, self.SRD_ACT + 3)) in x else x for x in g_])
        return out

    def variant(self, A, var):
        nm = self.name; nd = self.ND
        allw = [('gate', i) for i in range(7)] + [('up', i) for i in range(7)] + [('qkv', i) for i in range(6)]
        for th in (0, 1):
            lab = "L_%s_v%d_th%d" % (nm, var, th)
            if th == 0: A.e("s_cmp_ge_u32 s%d, 2\ns_cbranch_scc1 L_%s_v%d_th1", self.S_WAVE, nm, var)
            else: A.label(lab)
            w = var + 2 * th
            for sl in range(5):
                typ, i = allw[sl * 4 + w]
                self.slot_setup(A, sl, typ, i)
            if th == 0: A.e("s_branch L_%s_v%d_thx", nm, var)
        A.label("L_%s_v%d_thx" % (nm, var))
        srd(A, self.SRD_OUT, 44, 45, 65536)
        A.e("s_lshl_b32 s%d, s5, 11", self.S_T0)
        A.e("s_add_u32 s%d, s%d, %d", self.S_T0, self.S_T0, 1024 * var)
        A.e("s_mov_b32 m0, %d", L_WPHI + 1024 * var)
        A.e("s_nop 0")
        A.e("buffer_load_dwordx4 v%d, s[%d:%d], s%d offen lds", self.V_L16K[0], self.SRD_OUT, self.SRD_OUT + 3, self.S_T0)
        for st in range(NSTG):
            for sl in range(5):
                d = self.SRD_W[sl]
                A.e("s_add_u32 m0, s%d, %d", self.S_LDST[sl], st * L_STAGE)
                A.e("s_nop 0")
                A.e("buffer_load_dwordx4 v%d, s[%d:%d], s%d offen lds", self.V_WOFF[sl], d, d + 3, self.S_OFF[sl])
                A.e("s_add_u32 s%d, s%d, s%d", self.S_OFF[sl], self.S_OFF[sl], self.S_STR[sl])
        self.ln_compute(A, 21)
        for f in range(10):
            for t in range(8):
                b = self.ACC(f, t)
                for r_ in range(4):
                    A.e("v_accvgpr_write_b32 a%d, 0" % (b + r_ - 256) if b >= 256 else "v_mov_b32 v%d, 0" % (b + r_))
        A.e("s_waitcnt vmcnt(0)\ns_barrier")
        self.stamp(A, 77 + 14)
        lab = "L_%s_v%d_ln" % (nm, var)
        srd(A, 24, 58, 59, 256)
        A.e("s_cmp_eq_u32 s3, 0\ns_cbranch_scc0 %s_np", lab)
        A.e("s_lshl_b32 s%d, s4, 5", self.S_T0)
        A.e("v_mov_b32 v16, 1\nv_mov_b32 v17, 0")
        A.e("s_mov_b64 s[86:87], exec\ns_mov_b64 exec, 1")
        A.e("buffer_atomic_add v16, v17, s[24:27], s%d offen sc1", self.S_T0)
        poll(A, lab, 24, self.S_T0, 32, vtmp=18, vz=17, stmp=88, scnt=89)
        A.e("s_mov_b64 exec, s[86:87]")
        A.label(lab + "_np")
        A.e("s_barrier")
        for st in range(NSTG):
            for k in range(4):
                A.e("s_add_u32 m0, s%d, %d", self.S_LACT, st * L_STAGE + k * 1024)
                A.e("s_nop 0")
                A.e("buffer_load_dwordx4 v%d, s[%d:%d], s%d offen sc1 lds", self.V_L16K[k], self.SRD_ACT, self.SRD_ACT + 3, self.S_OFF_ACT)
            A.e("s_add_u32 s%d, s%d, 1024", self.S_OFF_ACT, self.S_OFF_ACT)
        A.e("s_mov_b32 s%d, 0\ns_mov_b32 s%d, 0", self.S_WB, self.S_RB)
        A.e("s_mov_b32 s%d, %d\ns_mov_b32 s%d, 0x%x", self.S_KP, L_STAGE, self.S_KN, (-3 * L_STAGE) & 0xffffffff)
        A.e("s_waitcnt vmcnt(4)\ns_barrier")
        A.ext(self.reads(var, 0))
        A.ext(flat(self.adv_read(var)))
        A.e("s_mov_b32 s%d, 16", self.S_CNT)
        if self.stamps: A.e("s_memrealtime s[92:93]")
        lab = "L_%s_loop%d" % (nm, var)
        A.L.append(".p2align 6")
        A.label(lab)
        A.ext(self.stage(var, 0, []))
        A.ext(self.stage(var, 1, ["  s_sub_u32 s%d, s%d, 1" % (self.S_CNT, self.S_CNT), "  s_cmp_lg_u32 s%d, 0" % self.S_CNT]))
        A.e("s_cbranch_scc1 %s", lab)
        if self.stamps: A.e("s_memrealtime s[94:95]")
        A.e("s_waitcnt vmcnt(0) lgkmcnt(0)")
        A.e("s_nop 7")
        self.epilogue(A, var)
        A.e("s_branch L_%s_g2", nm)

    def epilogue(self, A, var):
        g = self; nm = self.name
        L = g.V_LANE; L16 = g.V_L16K[0]
        SO = g.SRD_OUT; S2 = 12; SF = 16
        ST0, ST1, ST2 = g.S_T0, g.S_T1, g.S_T2
        SB = 32; SB2 = 33
        A.c("---- epilogue var %d" % var)
        A.e("s_mov_b32 s%d, 0x%x\ns_mov_b32 s%d, 0x%x", S_CP, LOG2E_BITS, S_CP + 1, LOG2E_BITS)
        A.e("s_mov_b32 s%d, 0x%x\ns_mov_b32 s%d, 0x%x", S_CN, LOG2E_BITS | 0x80000000, S_CN + 1, LOG2E_BITS | 0x80000000)
        srd(A, SO, 60, 61, 128 * ACT2_KS * 1024, WS_ACT2)
        A.e("v_lshrrev_b32 v3, 4, v%d", L)
        A.e("v_bfe_u32 v4, v%d, 2, 2", L)
        A.e("v_lshl_add_u32 v4, v3, 2, v4")
        A.e("v_and_b32 v5, 3, v%d", L)
        A.e("v_lshlrev_b32 v4, 6, v4")
        A.e("v_lshl_add_u32 v4, v5, 3, v4")
        A.e("v_add_u32 v4, %d, v4", L_WPHI)
        for fb in range(2):
            for t in range(2):
                A.e("ds_read_b64_tr_b16 %s, v4 offset:%d", R(A_WPHI + 4 * fb + 2 * t, 2), 16 * t * 64 + 32 * fb)
        A.e("s_lshl_b32 s%d, s4, 4\ns_lshl_b32 s%d, s%d, 3\ns_add_u32 s%d, s%d, s%d", ST0, ST1, g.S_TH, ST0, ST0, ST1)
        A.e("s_mul_i32 s%d, s%d, %d", SB2, ST0, ACT2_KS * 1024)
        A.e("s_lshr_b32 s%d, s5, 1\ns_mul_i32 s%d, s%d, 7", ST1, ST1, ST1)
        A.e("s_lshl_b32 s%d, s7, 2\ns_add_u32 s%d, s%d, s%d", ST2, ST2, ST2, ST1)
        def pair_stream(t, fa, tmp):
            s1, h1 = gu_block(g.ACC(fa, t), g.ACC(fa + 1, t), tmp)
            s2, h2 = gu_block(g.ACC(fa + 2, t), g.ACC(fa + 3, t), tmp + 8)
            return s1 + s2 + pack4(h1, h1, h2), h1
        def emit_pair(fa, ks_add):
            A.e("s_add_u32 s%d, s%d, %d\ns_lshl_b32 s%d, s%d, 10\ns_add_u32 s%d, s%d, s%d", SB, ST2, ks_add, SB, SB, SB, SB, SB2)
            for t0 in range(0, 8, 2):
                st = [pair_stream(t0 + k, fa, 16 + 16 * k) for k in range(2)]
                A.ext(zipstreams([st[0][0], st[1][0]]))
                for k in range(2):
                    A.e("buffer_store_dwordx4 %s, v%d, s[%d:%d], s%d offen sc1", vr(st[k][1], 4), L16, SO, SO + 3, SB)
                    A.e("s_add_u32 s%d, s%d, %d", SB, SB, ACT2_KS * 1024)
        if var == 1:
            emit_pair(2, 1); emit_pair(6, 2)
        else:
            emit_pair(4, 0)
            A.e("s_add_u32 s%d, s%d, 3\ns_lshl_b32 s%d, s%d, 10\ns_add_u32 s%d, s%d, s%d", SB, ST1, SB, SB, SB, SB, SB2)
            A.e("s_lshl_b32 s%d, s7, 3\ns_add_u32 s%d, s%d, s%d", ST1, SB, SB, ST1)
            for t0 in range(0, 8, 4):
                sts = []
                for k in range(4):
                    s1, h = gu_block(g.ACC(8, t0 + k), g.ACC(9, t0 + k), 16 + 8 * k)
                    s1 += ["  v_cvt_pk_bf16_f32 v%d, v%d, v%d" % (h, h, h + 1), "  v_cvt_pk_bf16_f32 v%d, v%d, v%d" % (h + 1, h + 2, h + 3)]
                    sts.append((s1, h))
                A.ext(zipstreams([s_[0] for s_ in sts]))
                for k in range(4):
                    A.e("buffer_store_dwordx2 %s, v%d, s[%d:%d], s%d offen sc1", vr(sts[k][1], 2), L16, SO, SO + 3, SB)
                    A.e("s_add_u32 s%d, s%d, %d", SB, SB, ACT2_KS * 1024)
        T = lambda t: 176 + 8 * t
        S = lambda t: 16 + 4 * t
        X0 = lambda t: g.ACC(0, t); X1 = lambda t: g.ACC(1, t)
        A.e("s_waitcnt lgkmcnt(0)")
        for t in range(8): A.ext(pack4(X0(t), X0(t), X1(t)))
        for t in range(8):
            A.L.append(mfma(X1(t), A_WPHI, X0(t), None))
            A.L.append(mfma(X0(t), A_WPHI + 4, X0(t), None))
        if var == 0:
            A.e("v_lshrrev_b32 v3, 4, v%d\nv_and_b32 v4, 15, v%d\nv_lshlrev_b32 v3, 2, v3\nv_sub_u32 v3, v4, v3", L, L)
            A.e("v_mov_b32 v5, 0x3f80\nv_mov_b32 v6, 0x3f800000\nv_mov_b32 v7, 0")
            A.e("v_cmp_eq_u32 vcc, 0, v3\nv_cndmask_b32 v8, v7, v5, vcc")
            A.e("v_cmp_eq_u32 vcc, 1, v3\nv_cndmask_b32 v8, v8, v6, vcc")
            A.e("v_cmp_eq_u32 vcc, 2, v3\nv_cndmask_b32 v9, v7, v5, vcc")
            A.e("v_cmp_eq_u32 vcc, 3, v3\nv_cndmask_b32 v9, v9, v6, vcc")
            i0 = A_ID - 256
            A.e("v_accvgpr_write_b32 a%d, v7\nv_accvgpr_write_b32 a%d, v7\nv_accvgpr_write_b32 a%d, v8\nv_accvgpr_write_b32 a%d, v9\nv_accvgpr_write_b32 a%d, v7\nv_accvgpr_write_b32 a%d, v7",
                i0, i0 + 1, i0 + 2, i0 + 3, i0 + 4, i0 + 5)
            A.e("v_mov_b32 v5, 0x3f803f80")
            for r_ in range(4): A.e("v_accvgpr_write_b32 a%d, v5", A_ONE - 256 + r_)
        A.ext(zipstreams([softmax_stream(X1(t), X0(t), T(t), S(t)) for t in range(8)]))
        srd(A, S2, 60, 61, 32 * 8 * 12 * 1024, WS_KVP)
        if var == 1:
            A.e("s_barrier")
        else:
            I1 = A_ID; I0 = A_ID + 2
            for t in range(8):
                A.L.append(mfma(X0(t), T(t), I0, None))
                A.L.append(mfma(T(t), T(t), I1, None))
                A.L.append(mfma(T(t) + 4, X1(t), I0, None))
                A.L.append(mfma(X1(t), X1(t), I1, None))
            V0 = lambda t: g.ACC(2, t); V1 = lambda t: g.ACC(3, t)
            for p in range(4):
                t0, t1 = 2 * p, 2 * p + 1
                A.ext(pack4(V0(t0), V0(t0), V0(t1)) + pack4(V1(t0), V1(t0), V1(t1)))
            for p in range(4):
                t0, t1 = 2 * p, 2 * p + 1
                A.ext(pack4(X0(t0), X0(t0), X0(t1)) + pack4(T(t0), T(t0), T(t1)) + pack4(T(t0) + 4, T(t0) + 4, T(t1) + 4) + pack4(X1(t0), X1(t0), X1(t1)))
            for p in range(4):
                t0 = 2 * p
                fr = [X0(t0), T(t0), T(t0) + 4, X1(t0)]
                for sf in range(4):
                    for db in range(2):
                        d = A_KV + 4 * (sf * 2 + db)
                        A.L.append(mfma(d, fr[sf], V0(t0) if db == 0 else V1(t0), None if p == 0 else d))
                    d = A_KV + 4 * (8 + sf)
                    A.L.append(mfma(d, fr[sf], A_ONE, None if p == 0 else d))
            A.e("s_mul_i32 s%d, s%d, 6144", ST1, g.S_TH)
            A.e("v_add_u32 v3, %d, v%d", L_XCH, L16)
            A.e("v_add_u32 v4, s%d, v3", ST1)
            A.e("s_xor_b32 s%d, s%d, 6144", ST1, ST1)
            A.e("v_add_u32 v5, s%d, v3", ST1)
            A.e("s_cmp_eq_u32 s%d, 0\ns_cbranch_scc0 L_%s_xch1", g.S_TH, nm)
            for th in range(2):
                if th == 1: A.label("L_%s_xch1" % nm)
                keep = range(6 * th, 6 * th + 6); send = range(6 * (1 - th), 6 * (1 - th) + 6)
                for k, b in enumerate(send):
                    A.e("ds_write_b128 v4, %s offset:%d", R(A_KV + 4 * b, 4), k * 1024)
                for k, b in enumerate(keep):
                    for r_ in range(4): A.e("v_accvgpr_read_b32 v%d, a%d", 48 + 4 * k + r_, A_KV - 256 + 4 * b + r_)
                A.e("s_waitcnt lgkmcnt(0)\ns_barrier")
                for k in range(6): A.e("ds_read_b128 %s, v5 offset:%d", vr(80 + 4 * k, 4), k * 1024)
                A.e("s_lshl_b32 s%d, s5, 3\ns_add_u32 s%d, s%d, s4\ns_mul_i32 s%d, s%d, %d", SB, SB, SB, SB, SB, 12 * 1024)
                A.e("s_add_u32 s%d, s%d, %d", SB, SB, 6 * th * 1024)
                A.e("s_waitcnt lgkmcnt(0)")
                for k in range(6):
                    for r_ in (0, 2):
                        A.e("v_pk_add_f32 %s, %s, %s", vr(48 + 4 * k + r_, 2), vr(48 + 4 * k + r_, 2), vr(80 + 4 * k + r_, 2))
                for k in range(6):
                    if k == 4: A.e("s_add_u32 s%d, s%d, 4096", SB, SB)
                    A.e("buffer_store_dwordx4 %s, v%d, s[%d:%d], s%d offen offset:%d sc1", vr(48 + 4 * k, 4), L16, S2, S2 + 3, SB, (k % 4) * 1024)
                if th == 0: A.e("s_branch L_%s_xchd", nm)
            A.label("L_%s_xchd" % nm)
        lab = "L_%s_e%d" % (nm, var)
        A.e("s_waitcnt vmcnt(0)\ns_barrier")
        if self.stamps: A.e("s_memrealtime s[100:101]\ns_waitcnt lgkmcnt(0)\ns_mov_b32 s77, s100")
        srd(A, SF, 60, 61, N_FLAGS * 128, WS_FLAG)
        if var == 0:
            A.e("s_cmp_eq_u32 s3, 0\ns_cbranch_scc0 %s_np", lab)
            A.e("s_mov_b64 s[86:87], exec")
            srd(A, 20, 58, 59, 256)
            A.e("v_lshlrev_b32 v16, 5, v%d\ns_mov_b64 exec, 0xff\ns_mov_b32 s89, 0", L)
            A.label(lab + "_all")
            A.e("buffer_load_dword v17, v16, s[20:23], 0 offen sc1\ns_waitcnt vmcnt(0)\nv_cmp_le_u32 vcc, 32, v17")
            A.e("s_add_u32 s89, s89, 1\ns_cmp_eq_u64 vcc, exec\ns_cbranch_scc1 %s_allok\ns_cmp_ge_u32 s89, %d\ns_cbranch_scc1 %s_allok\ns_sleep 1\ns_branch %s_all", lab, SPIN_MAX, lab, lab)
            A.label(lab + "_allok")
            A.e("s_mov_b64 exec, 1\nv_mov_b32 v16, 1\nv_mov_b32 v17, 0")
            A.e("s_lshl_b32 s%d, s4, 2\ns_lshr_b32 s%d, s5, 3\ns_add_u32 s%d, s%d, s%d\ns_lshl_b32 s%d, s%d, 7\ns_add_u32 s34, s%d, %d", ST0, ST1, ST0, ST0, ST1, ST0, ST0, ST0, F_HRDY)
            A.e("buffer_atomic_add v16, v17, s[%d:%d], s34 offen sc1", SF, SF + 3)
            A.e("s_lshl_b32 s%d, s5, 7", ST0)
            A.e("buffer_atomic_add v16, v17, s[%d:%d], s%d offen sc1", SF, SF + 3, ST0)
            poll(A, lab + "_hd", SF, ST0, 8, vtmp=18, vz=17, stmp=88, scnt=89)
            A.e("s_mov_b64 exec, s[86:87]")
            A.label(lab + "_np")
        A.e("s_barrier")
        if self.stamps: A.e("s_memrealtime s[100:101]\ns_waitcnt lgkmcnt(0)\ns_mov_b32 s78, s100")
        PR = [112 + 4 * i for i in range(16)] + [240 + 4 * i for i in range(4)] + [48 + 4 * i for i in range(4)]
        A.e("s_mul_i32 s%d, s5, %d\ns_mul_i32 s%d, s3, 3072\ns_add_u32 s%d, s%d, s%d", SB, 8 * 12 * 1024, ST1, SB, SB, ST1)
        for mm in range(8):
            for k in range(3):
                A.e("buffer_load_dwordx4 %s, v%d, s[%d:%d], s%d offen offset:%d sc1", vr(PR[mm * 3 + k], 4), L16, S2, S2 + 3, SB, k * 1024)
            A.e("s_add_u32 s%d, s%d, %d", SB, SB, 12 * 1024)
        A.e("s_waitcnt vmcnt(0)")
        for mm in range(1, 8):
            for k in range(3):
                for r_ in (0, 2):
                    A.e("v_pk_add_f32 %s, %s, %s", vr(PR[k] + r_, 2), vr(PR[k] + r_, 2), vr(PR[mm * 3 + k] + r_, 2))
        for k in range(3):
            A.e("v_cvt_pk_bf16_f32 v%d, v%d, v%d\nv_cvt_pk_bf16_f32 v%d, v%d, v%d", 16 + 2 * k, PR[k], PR[k] + 1, 17 + 2 * k, PR[k] + 2, PR[k] + 3)
        A.e("v_lshlrev_b32 v3, 3, v%d\nv_add_u32 v3, %d, v3\ns_mul_i32 s%d, s3, 1536\nv_add_u32 v4, s%d, v3", L, L_XCH, ST1, ST1)
        for k in range(3): A.e("ds_write_b64 v4, v[%d:%d] offset:%d", 16 + 2 * k, 17 + 2 * k, k * 512)
        A.e("s_waitcnt lgkmcnt(0)\ns_barrier")
        if var == 1:
            fr = lambda sign, db: 112 + 4 * (sign * 2 + db)
            ZF = lambda sign: 128 + 4 * sign
            for sign in range(2):
                for db in range(2):
                    for fb in range(2):
                        A.e("ds_read_b64 v[%d:%d], v3 offset:%d", fr(sign, db) + 2 * fb, fr(sign, db) + 2 * fb + 1, ((sign * 2 + fb) * 2 + db) * 512)
                for fb in range(2):
                    A.e("ds_read_b64 v[%d:%d], v3 offset:%d", ZF(sign) + 2 * fb, ZF(sign) + 2 * fb + 1, (8 + sign * 2 + fb) * 512)
            A.e("s_add_u32 s%d, s5, 112\ns_lshl_b32 s%d, s%d, 10\ns_add_u32 s%d, s%d, s%d", SB, SB, SB, SB, SB, SB2)
            A.e("s_waitcnt lgkmcnt(0)")
            for hb in range(2):
                ts = range(4 * hb, 4 * hb + 4)
                D = lambda t: 16 + 12 * (t % 4)
                for t in ts:
                    for db in range(2): A.L.append(mfma(D(t) + 4 * db, fr(0, db), T(t), None))
                    A.L.append(mfma(D(t) + 8, ZF(0), T(t), None))
                for t in ts:
                    for db in range(2): A.L.append(mfma(D(t) + 4 * db, fr(1, db), X1(t), D(t) + 4 * db))
                    A.L.append(mfma(D(t) + 8, ZF(1), X1(t), D(t) + 8))
                for t in ts: A.e("v_add_f32 v%d, 0x358637bd, v%d", D(t) + 8, D(t) + 8)
                for t in ts: A.e("v_rcp_f32 v%d, v%d", D(t) + 8, D(t) + 8)
                for t in ts:
                    for r_ in (0, 2, 4, 6):
                        A.e("v_pk_mul_f32 v[%d:%d], v[%d:%d], v[%d:%d] op_sel_hi:[1,0]", D(t) + r_, D(t) + r_ + 1, D(t) + r_, D(t) + r_ + 1, D(t) + 8, D(t) + 9)
                for t in ts:
                    for k in range(4): A.e("v_cvt_pk_bf16_f32 v%d, v%d, v%d", D(t) + k, D(t) + 2 * k, D(t) + 2 * k + 1)
                    A.e("buffer_store_dwordx4 v[%d:%d], v%d, s[%d:%d], s%d offen sc1", D(t), D(t) + 3, L16, SO, SO + 3, SB)
                    A.e("s_add_u32 s%d, s%d, %d", SB, SB, ACT2_KS * 1024)
        A.e("s_waitcnt vmcnt(0)\ns_barrier")
        if var == 0:
            A.e("s_cmp_eq_u32 s3, 0\ns_cbranch_scc0 %s_np2", lab)
            A.e("s_mov_b64 s[86:87], exec\ns_mov_b64 exec, 1\nv_mov_b32 v16, 1\nv_mov_b32 v17, 0")
            A.e("s_add_u32 s34, s34, %d", F_ORDY - F_HRDY)
            A.e("buffer_atomic_add v16, v17, s[%d:%d], s34 offen sc1", SF, SF + 3)
            A.e("s_mov_b64 exec, s[86:87]")
            A.label(lab + "_np2")
        if self.stamps: A.e("s_memrealtime s[100:101]\ns_waitcnt lgkmcnt(0)\ns_mov_b32 s79, s100")

    def g2_phase(self, A):
        g2 = self.g2; nm = self.name
        g2.setup(A)
        g2.w_prologue(A)
        lab = "L_%s_g2h" % nm
        A.e("s_cmp_eq_u32 s3, 0\ns_cbranch_scc0 %s_np", lab)
        A.e("s_sub_u32 s%d, s%d, %d", g2.S_T3, g2.S_OF, F_ORDY - F_HRDY)
        A.e("s_mov_b64 s[86:87], exec\ns_mov_b64 exec, 1")
        poll(A, lab, g2.SRD_F, g2.S_T3, 8, vtmp=18, vz=g2.V_Z, stmp=88, scnt=89)
        A.e("s_mov_b64 exec, s[86:87]")
        A.label(lab + "_np")
        A.e("s_barrier")
        if self.stamps: A.e("s_memrealtime s[100:101]\ns_waitcnt lgkmcnt(0)\ns_mov_b32 s80, s100")
        g2.x_prologue(A)
        A.e("s_waitcnt vmcnt(%d)\ns_barrier", 4 * (g2.XD - 1))
        g2.stamps = False
        if self.stamps: A.e("s_memrealtime s[100:101]\ns_waitcnt lgkmcnt(0)\ns_mov_b32 s81, s100")
        g2.loop(A)
        A.e("s_waitcnt vmcnt(0)")
        if self.stamps: A.e("s_memrealtime s[100:101]\ns_waitcnt lgkmcnt(0)\ns_mov_b32 s82, s100")
        g2.epilogue(A)

    def store_stamps(self, A):
        A.e("s_waitcnt vmcnt(0)\ns_memrealtime s[98:99]\ns_waitcnt lgkmcnt(0)")
        srd(A, 16, 60, 61, 0x100000, WS_STAMP + 0x50000)
        A.e("s_lshl_b32 s64, s2, 2\ns_add_u32 s64, s64, s3\ns_lshl_b32 s64, s64, 6")
        regs = [96, 91, 92, 94, 77, 78, 79, 80, 81, 82, 98]
        for k, r_ in enumerate(regs): A.e("v_mov_b32 v%d, s%d", 20 + k, r_)
        A.e("v_mov_b32 v17, 0\nv_cmp_eq_u32 vcc, 0, v1\ns_and_saveexec_b64 s[84:85], vcc")
        A.e("buffer_store_dwordx4 v[20:23], v17, s[16:19], s64 offen\nbuffer_store_dwordx4 v[24:27], v17, s[16:19], s64 offen offset:16\nbuffer_store_dwordx4 v[28:31], v17, s[16:19], s64 offen offset:32")
        A.e("s_mov_b64 exec, s[84:85]")

    def body(self):
        A = Asm(); nm = self.name
        self.prologue(A)
        self.ln_loads(A)
        A.e("s_bitcmp1_b32 s%d, 0", self.S_WAVE)
        A.e("s_cbranch_scc1 L_%s_var1", nm)
        self.variant(A, 0)
        A.label("L_%s_var1" % nm)
        self.variant(A, 1)
        A.label("L_%s_g2" % nm)
        self.g2_phase(A)
        if self.stamps: self.store_stamps(A)
        A.label("L_%s_done" % nm)
        A.e("s_endpgm")
        return fix_hazards(A.L)

def build(stamps=False, g2kw=None):
    f = Fused(stamps=stamps, g2kw=g2kw)
    from g1 import kernel_text, kernel_desc
    L = ["; @launch grid=(256,1,1) block=(256,1,1) lds=%d" % (L_XCH + 12288), '.amdgcn_target "amdgcn-amd-amdhsa--gfx950"']
    L += kernel_text(f.name, f.body(), 512, 256)
    L += ['.section .rodata,"a"', ".p2align 6"] + kernel_desc(f.name, 512, 256, nsgpr=102)
    return "\n".join(L) + "\n"
HEADER = open('parallel_sum__linear_kernel_hedgehog__glu_gated_reglu__prompt.s.ref').read().split('; Override launch')[0]
if __name__ == '__main__':
    import sys
    open(sys.argv[1], 'w').write(HEADER + build(stamps=(len(sys.argv) > 2)))
```
